```python
import torch

def _softmax(x, axis=-1):
    return torch.softmax(x, dim=axis)
def _gelu(x):
    return torch.nn.functional.gelu(x, approximate="tanh")
def _silu(x):
    return torch.nn.functional.silu(x)
def _sigmoid(x):
    return torch.sigmoid(x)
def _layernorm(x, axis=-1, eps=1e-5):
    m = x.mean(dim=axis, keepdim=True)
    v = x.var(dim=axis, keepdim=True, unbiased=False)
    return (x - m) / torch.sqrt(v + eps)
def _scatter_add(tgt, idx, src, axis=0):
    return tgt.clone().index_add_(axis, idx, src)
def _segment_sum(src, seg, n):
    out = torch.zeros((n,) + src.shape[1:], dtype=src.dtype)
    return out.index_add_(0, seg, src)
def _pad(x, pw):
    flat = tuple(v for pair in reversed(pw) for v in pair)
    return torch.nn.functional.pad(x, flat)

kernel_name = 'sequential_preLN__sliding_local_dilated__glu_gated_glu__prompt'

def setup_inputs():

    _w = (lambda a: (lambda t: t.to(torch.bfloat16) if t.is_floating_point() else t)(torch.as_tensor(a)))
    def _A_setup():
        B, S, D = 1, 2048, 512
        return {
            "x": _w((lambda *s: torch.randn(*s, dtype=torch.bfloat16) * 0.05)(B, S, D)),
            "wqkv": _w((lambda *s: torch.randn(*s, dtype=torch.bfloat16) * 0.05)(D, 3 * D)),
            "wo": _w((lambda *s: torch.randn(*s, dtype=torch.bfloat16) * 0.05)(D, D)),
        }
    _A_in = _A_setup()

    def _B_setup():
        B, S, D, F = 1, 2048, 512, 1792
        return {
            "x": _w((lambda *s: torch.randn(*s, dtype=torch.bfloat16) * 0.05)(B, S, D)),
            "w_gate": _w((lambda *s: torch.randn(*s, dtype=torch.bfloat16) * 0.05)(D, F)),
            "w_up": _w((lambda *s: torch.randn(*s, dtype=torch.bfloat16) * 0.05)(D, F)),
            "w_down": _w((lambda *s: torch.randn(*s, dtype=torch.bfloat16) * 0.05)(F, D)),
        }
    _B_in = _B_setup()

    return {
        "A_x": _A_in["x"],
        "A_wqkv": _A_in["wqkv"],
        "A_wo": _A_in["wo"],
        "B_x": _B_in["x"],
        "B_w_gate": _B_in["w_gate"],
        "B_w_up": _B_in["w_up"],
        "B_w_down": _B_in["w_down"],
    }

def reference(A_x, A_wqkv, A_wo, B_x, B_w_gate, B_w_up, B_w_down):
    def _A_ref(x, wqkv, wo):
        B, S, D = x.shape
        H = 32; Dh = D // H
        W, dil = 8, 2
        qkv = (lambda x, *d: x.permute(*d))((x @ wqkv).reshape(B, S, 3, H, Dh), 2, 0, 3, 1, 4)
        q, k, v = qkv[0], qkv[1], qkv[2]
        scale = Dh ** -0.5
        pos = torch.arange(S)
        off = torch.arange(W) * dil
        idx = pos[:, None] - off[None, :]
        mask = idx >= 0
        idx_c = torch.where(mask, idx, 0).reshape(-1)
        kg = k[:, :, idx_c, :].reshape(B, H, S, W, Dh)
        vg = v[:, :, idx_c, :].reshape(B, H, S, W, Dh)
        logits = torch.einsum("bhsd,bhswd->bhsw", q, kg) * scale
        logits = torch.where(mask[None, None, :, :], logits, -1e9)
        attn = _softmax(logits, axis=-1)
        o = torch.einsum("bhsw,bhswd->bhsd", attn, vg)
        return (lambda x, *d: x.permute(*d))(o, 0, 2, 1, 3).reshape(B, S, D) @ wo

    def _B_ref(x, w_gate, w_up, w_down):
        g = torch.einsum("bsd,df->bsf", x, w_gate)
        u = torch.einsum("bsd,df->bsf", x, w_up)
        h = _sigmoid(g) * u
        return torch.einsum("bsf,fd->bsd", h, w_down)

    x = A_x
    h = x + _A_ref(_layernorm(x, axis=-1), A_wqkv, A_wo)
    h2 = h + _B_ref(_layernorm(h, axis=-1), B_w_gate, B_w_up, B_w_down)
    return h2
```

```python
import re

REG_RE = re.compile(r'^(-|\|)?(v|a|s)(\d+)$')
RNG_RE = re.compile(r'^(-|\|)?(v|a|s)\[(\d+):(\d+)\]$')

def regs_of(tok):
    tok = tok.strip()
    if tok.startswith('-'): tok = tok[1:]
    if tok.startswith('abs(') and tok.endswith(')'): tok = tok[4:-1]
    m = REG_RE.match(tok)
    if m: return {(m.group(2), int(m.group(3)))}
    m = RNG_RE.match(tok)
    if m: return {(m.group(2), i) for i in range(int(m.group(3)), int(m.group(4)) + 1)}
    if tok == 'vcc': return {('s', 'vcc')}
    if tok in ('vcc_lo', 'vcc_hi'): return {('s', 'vcc')}
    if tok in ('exec','exec_lo','exec_hi'): return {('s', 'exec')}
    if tok == 'm0': return {('s', 'm0')}
    return set()

TRANS = ('v_exp_f32', 'v_log_f32', 'v_rcp_f32', 'v_rsq_f32', 'v_sqrt_f32', 'v_sin_f32', 'v_cos_f32')

class Ins:
    __slots__ = ('text', 'mn', 'dst', 'src', 'cls', 'ops')
    def __init__(self, text):
        self.text = text
        t = text.split(';')[0].strip()
        parts = t.split(None, 1)
        mn = parts[0]
        self.mn = mn
        rest = parts[1] if len(parts) > 1 else ''
        ops = []; cur = ''; depth = 0
        for ch in rest:
            if ch == '[': depth += 1
            if ch == ']': depth -= 1
            if ch == ',' and depth == 0:
                ops.append(cur.strip()); cur = ''
            else: cur += ch
        if cur.strip(): ops.append(cur.strip())
        mods = ''
        if ops:
            sp = ops[-1].split(None, 1)
            ops[-1] = sp[0]
            mods = sp[1] if len(sp) > 1 else ''
        self.ops = ops
        dst = set(); src = set()
        cls = 'other'
        R = [regs_of(o) for o in ops]
        if mn.startswith('v_mfma'):
            cls = 'mfma'; dst = R[0]; src = R[1] | R[2] | (R[3] if len(R) > 3 else set())
        elif mn.startswith('v_cmp'):
            cls = 'valu'; dst = R[0]; src = set().union(*R[1:]) if len(R) > 1 else set()
            if mn.startswith('v_cmpx'): dst = dst | {('s', 'exec')}
        elif mn.startswith('v_permlane'):
            cls = 'valu'; dst = R[0] | R[1]; src = R[0] | R[1]
        elif mn.startswith('v_readfirstlane') or mn.startswith('v_readlane'):
            cls = 'valu'; dst = R[0]; src = set().union(*R[1:])
        elif mn.startswith('v_'):
            cls = 'valu'; dst = R[0]; src = set().union(*R[1:]) if len(R) > 1 else set()
            base = mn.replace('_e32', '').replace('_e64', '').replace('_dpp', '').replace('_sdwa', '')
            if base in ('v_fmac_f32', 'v_dot2c_f32_bf16', 'v_writelane_b32', 'v_accvgpr_write_b32x') or '_dpp' in mn:
                src = src | R[0]
            if base.startswith('v_add_co') or base.startswith('v_addc_co') or base.startswith('v_sub_co') or base.startswith('v_subb_co'):
                dst = R[0] | R[1]; src = set().union(*R[2:])
            if base == 'v_cndmask_b32' and len(ops) == 3:
                src = src | {('s', 'vcc')}
        elif mn.startswith('ds_read') or mn.startswith('ds_bpermute') or mn.startswith('ds_swizzle'):
            cls = 'ds'; dst = R[0]; src = set().union(*R[1:]) if len(R) > 1 else set()
        elif mn.startswith('ds_write'):
            cls = 'ds'; src = set().union(*R)
        elif mn.startswith('buffer_load') or mn.startswith('global_load'):
            cls = 'vmem'
            if ' lds' in (' ' + mods + ' ') or mn.startswith('global_load_lds'):
                src = set().union(*R) | {('s', 'm0')}; cls = 'vmem_lds'
            else:
                dst = R[0]; src = set().union(*R[1:])
        elif mn.startswith('buffer_store') or mn.startswith('global_store'):
            cls = 'vmem_st'; src = set().union(*R)
        elif mn.startswith('buffer_atomic') or mn.startswith('global_atomic'):
            cls = 'vmem_st'; src = set().union(*R)
        elif mn.startswith('buffer_'):
            cls = 'vmem'
        elif mn.startswith('s_'):
            cls = 'salu'
            if mn in ('s_waitcnt', 's_barrier', 's_nop', 's_endpgm', 's_branch', 's_sleep', 's_setprio') or mn.startswith('s_cbranch'):
                pass
            elif mn.startswith('s_cmp') or mn.startswith('s_bitcmp'):
                src = set().union(*R)
            elif mn.startswith('s_load') or mn.startswith('s_memtime') or mn.startswith('s_memrealtime'):
                dst = R[0]; src = set().union(*R[1:]) if len(R) > 1 else set()
            else:
                dst = R[0]; src = set().union(*R[1:]) if len(R) > 1 else set()
                if 'saveexec' in mn: dst = dst | {('s', 'exec')}
        self.dst = dst; self.src = src; self.cls = cls
    def states(self):
        if self.mn == 's_nop': return int(self.ops[0], 0) + 1
        return 1

def is_dot(i): return i.mn.startswith('v_dot')
def is_trans(i): return i.mn.replace('_e32', '').replace('_e64', '') in TRANS
def vg(s): return {r for r in s if r[0] in ('v', 'a')}
def sg(s): return {r for r in s if r[0] == 's'}
def mfma_passes(i):
    return 8 if '32x32' in i.mn else 4

def required(p, c):
    need = 0
    if p.cls == 'valu':
        pw = vg(p.dst)
        if c.cls == 'mfma' and pw & vg(c.src): need = max(need, 2)
        if c.mn.startswith('v_permlane') and pw & vg(c.src): need = max(need, 2)
        if '_dpp' in c.mn and pw & vg(c.src): need = max(need, 2)
        if (c.mn.startswith('v_readfirstlane') or c.mn.startswith('v_readlane')) and pw & vg(c.src): need = max(need, 1)
        if is_trans(p) and c.cls in ('valu', 'mfma') and not is_trans(c) and pw & vg(c.src): need = max(need, 1)
        if is_trans(p) and c.cls in ('ds', 'vmem', 'vmem_st', 'vmem_lds') and pw & vg(c.src): need = max(need, 1)
        if is_dot(p):
            if is_dot(c) and c.mn[:12] == p.mn[:12]:
                ab = set()
                for o in c.ops[1:3]: ab |= regs_of(o)
                if pw & ab: need = max(need, 3)
            elif pw & (vg(c.src) | vg(c.dst)): need = max(need, 3)
        ps = sg(p.dst)
        if ps:
            if c.cls in ('vmem', 'vmem_st', 'vmem_lds') and ps & sg(c.src): need = max(need, 5)
            if c.cls in ('valu', 'mfma') and ps & sg(c.src): need = max(need, 2)
            if (c.mn.startswith('v_readlane') or c.mn.startswith('v_writelane')) and ps & sg(c.src): need = max(need, 4)
            if c.cls == 'salu' and ps & sg(c.src): need = max(need, 1)
            if ('s', 'exec') in ps and c.cls == 'mfma': need = max(need, 4)
            if ('s', 'vcc') in ps and c.mn.startswith('s_cbranch_vcc'): need = max(need, 5)
        if '_sdwa' in p.mn or 'op_sel' in p.text and not p.mn.startswith('v_pk'):
            if c.cls in ('valu',) and pw & vg(c.src): need = max(need, 1)
    if p.cls == 'mfma':
        n = mfma_passes(p)
        d = vg(p.dst)
        if c.cls == 'mfma':
            cC = regs_of(c.ops[3]) if len(c.ops) > 3 else set()
            cAB = regs_of(c.ops[1]) | regs_of(c.ops[2])
            if d & cAB: need = max(need, {4: 8, 8: 12}[n])
            if d & cC:
                if cC == d and mfma_passes(c) == n: pass
                else: need = max(need, {4: 6, 8: 10}[n])
            if d & vg(c.dst) and not (d & cC):
                need = max(need, {4: 8, 8: 12}[n])
        else:
            if c.cls in ('valu', 'ds', 'vmem', 'vmem_st', 'vmem_lds') and d & (vg(c.src) | vg(c.dst)): need = max(need, {4: 8, 8: 12}[n])
        if c.cls == 'valu':
            pC = regs_of(p.ops[3]) if len(p.ops) > 3 else set()
            if vg(pC) & vg(c.dst): need = max(need, {4: 3, 8: 7}[n])
    if p.cls == 'vmem_st':
        if c.cls == 'valu' and ('x4' in p.mn or 'x3' in p.mn) and vg(p.src) & vg(c.dst): need = max(need, 2)
        if c.cls in ('ds', 'vmem') and ('x4' in p.mn or 'x3' in p.mn) and vg(p.src) & vg(c.dst): need = max(need, 1)
    if p.cls == 'salu':
        if ('s', 'm0') in p.dst and c.cls == 'vmem_lds': need = max(need, 1)
    return need

class Asm:
    def __init__(self):
        self.items = []
        self.vm = []
        self.lg = []
        self.nlabel = 0
    def raw(self, t): self.items.append(('raw', t))
    def label(self, name): self.items.append(('l', name))
    def newlabel(self, p='L'):
        self.nlabel += 1; return f'{p}_{self.nlabel}'
    def __call__(self, text):
        for ln in text.split('\n'):
            ln = ln.strip()
            if not ln or ln.startswith(';'):
                if ln: self.items.append(('raw', ln))
                continue
            if ln.endswith(':'): self.label(ln[:-1]); continue
            self.items.append(('i', Ins(ln)))
    def vmem(self, text, tag):
        self(text); self.vm.append(tag)
    def ds(self, text, tag=None):
        self(text); self.lg.append(tag)
    def vm_n(self, tag):
        idx = max(i for i, t in enumerate(self.vm) if t == tag)
        return len(self.vm) - 1 - idx
    def wait_vm(self, tag):
        if tag not in self.vm: return
        n = self.vm_n(tag)
        self(f's_waitcnt vmcnt({min(n, 63)})')
        if n <= 63:
            idx = len(self.vm) - 1 - n
            self.vm = self.vm[idx + 1:]
    def wait_vm_all(self):
        self('s_waitcnt vmcnt(0)'); self.vm = []
    def wait_lg(self, tag):
        if tag not in self.lg: return
        idx = max(i for i, t in enumerate(self.lg) if t == tag)
        n = len(self.lg) - 1 - idx
        self(f's_waitcnt lgkmcnt({min(n, 15)})')
        if n <= 15: self.lg = self.lg[idx + 1:]
        else: self.lg = self.lg[len(self.lg) - 15:]
    def wait_lg_all(self):
        self('s_waitcnt lgkmcnt(0)'); self.lg = []
    def finalize(self, verbose=False):
        out = []
        W = 20
        hist = []
        cur = []
        alt = []
        saved = {}
        nn = 0
        clock = 0
        def check(h, c, now):
            need = 0
            for (p, t) in h:
                d = now - t - p.states()
                r = required(p, c)
                if r > d: need = max(need, r - d)
            return need
        total_nops = 0
        for kind, x in self.items:
            if kind == 'raw': out.append(x); continue
            if kind == 'l':
                out.append(x + ':')
                if x in saved:
                    for (h, t_at) in saved[x]:
                        alt.append([(p, t + (clock - t_at)) for (p, t) in h])
                continue
            c = x
            need = check(cur, c, clock)
            for h in alt: need = max(need, check(h, c, clock))
            while need > 0:
                k = min(need, 16)
                n = Ins(f's_nop {k - 1}')
                out.append('  ' + n.text); cur.append((n, clock)); clock += k; need -= k; total_nops += 1
            out.append('  ' + c.text)
            cur.append((c, clock)); clock += c.states()
            cur = [(p, t) for (p, t) in cur if clock - t < W + 4]
            alt = [[(p, t) for (p, t) in h if clock - t < W + 4] for h in alt]
            alt = [h for h in alt if h]
            if c.mn.startswith('s_cbranch') or c.mn == 's_branch':
                tgt = c.ops[0]
                saved.setdefault(tgt, []).append((list(cur) + [e for h in alt for e in h], clock))
                if c.mn == 's_branch': cur = []; alt = []
        if verbose: print('hazard nops inserted:', total_nops)
        return '\n'.join(out) + '\n'
```

```python
from gen import *

W4_ORDER = [SLOT[3], SLOT[4], SLOT[0], SLOT[1], SLOT[2]]
def w4_place(u):
    u = u % 35
    return W4_ORDER[u // 7] + 4096 * (u % 7)

vW24A = 200
vRED = 206
vMEAN1 = 207
vT = 220

class Gen2(Gen):
    def w24_read_addr(self):
        a = self.a
        T = vT
        a(f"v_lshrrev_b32 v{T}, 5, v{vL}")
        a(f"v_and_b32 v{T+1}, 15, v{vL}")
        a(f"v_lshrrev_b32 v{T+2}, 2, v{T+1}")
        a(f"v_lshl_add_u32 v{T+2}, v{T}, 2, v{T+2}")
        a(f"v_lshlrev_b32 v{T+2}, 7, v{T+2}")
        a(f"v_add_u32 v{T+2}, s{sL24}, v{T+2}")
        a(f"v_and_b32 v{T+3}, 1, v{vL}")
        a(f"v_lshl_add_u32 v{T+2}, v{T+3}, 3, v{T+2}")
        a(f"v_bfe_u32 v{T+3}, v{vL}, 1, 1")
        a(f"v_bfe_u32 v{T+4}, v{vL}, 4, 1")
        a(f"v_lshl_add_u32 v{T+3}, v{T+4}, 1, v{T+3}")
        a(f"v_bfe_u32 v{T+4}, v{vL}, 3, 1")
        a(f"v_lshlrev_b32 v{T+4}, 2, v{T+4}")
        a(f"v_xor_b32 v{T+3}, v{T+3}, v{T+4}")
        a(f"s_and_b32 s{sT0}, s{sW}, 1")
        a(f"s_lshl_b32 s{sT0}, s{sT0}, 2")
        for aa in range(2):
            a(f"v_xor_b32 v{T+4}, s{sT0}, v{T+3}")
            if aa: a(f"v_xor_b32 v{T+4}, 4, v{T+4}")
            a(f"v_lshl_add_u32 v{vW24A+3*aa}, v{T+4}, 4, v{T+2}")
            a(f"v_add_u32 v{vW24A+3*aa+1}, 0x10000, v{vW24A+3*aa}")
            a(f"v_add_u32 v{vW24A+3*aa+2}, 0x20000, v{vW24A+3*aa}")
        a(f"v_add_u32 v{vRED}, s{sL24}, v{vL16}")

    def w24_reads(self, place_fn, j, p):
        a = self.a
        res = []
        for aa in range(2):
            for h in range(2):
                off = place_fn(2*j + h)
                r = vW24A + 3*aa + (off >> 16)
                d = 128 + 8*p + 4*aa + 2*h
                res.append((lambda r=r, d=d, off=off, aa=aa: a.ds(f"ds_read_b64_tr_b16 v[{d}:{d+1}], v{r} offset:{off & 0xffff}", ('W', j, aa))))
        return res

    def reduce4(self, place_fn):
        a = self.a
        def addr(reg_base, off):
            return off
        a(f"v_add_u32 v208, 0x10000, v{vRED}")
        a(f"v_add_u32 v209, 0x20000, v{vRED}")
        regs = [vRED, 208, 209]
        for k in range(1, 4):
            for jj in range(4):
                off = place_fn(4*(k-1) + jj)
                b = 32 + 16*k + 4*jj
                a.ds(f"ds_write_b128 v{regs[off >> 16]}, v[{b}:{b+3}] offset:{off & 0xffff}", 'red')

    def reduce4_read(self, place_fn):
        a = self.a
        for k in range(1, 4):
            a(f"v_xor_b32 v{vT}, {1024*k}, v{vRED}")
            a(f"v_add_u32 v{vT+1}, 0x10000, v{vT}")
            a(f"v_add_u32 v{vT+2}, 0x20000, v{vT}")
            for jj in range(4):
                off = place_fn(4*(k-1) + jj)
                b = 32 + 16*k + 4*jj
                a.ds(f"ds_read_b128 v[{b}:{b+3}], v{vT + (off >> 16)} offset:{off & 0xffff}", ('red', k))
        for k in range(1, 4):
            a.wait_lg(('red', k))
            for p in range(8):
                a(f"v_pk_add_f32 v[{32+2*p}:{33+2*p}], v[{32+2*p}:{33+2*p}], v[{32+16*k+2*p}:{33+16*k+2*p}]")

    def p2(self):
        a = self.a
        for b in range(2):
            a(f"s_lshr_b32 s{sT0}, s{sW}, 1")
            a(f"s_xor_b32 s{sT0}, s{sT0}, {b}")
            a(f"s_add_u32 s{sT0}, s{sT0}, s{sMB0}")
            a(f"s_lshl_b32 s{sT0}, s{sT0}, 5")
            a(f"s_lshl_b32 s{sT1}, s{sW}, 3")
            a(f"s_add_u32 s{sT0}, s{sT0}, s{sT1}")
            a(f"s_lshl_b32 s{72+20+2*b}, s{sT0}, 10".replace("72+20+0","92").replace("72+20+2","94"))
        sF = [92, 94]
        for b in range(2):
            if O_OFF: a(f"s_add_u32 s{sF[b]}, s{sF[b]}, {O_OFF}")
            a(f"s_add_u32 s{sF[b]+1}, s{sF[b]}, 4096")
        for j in range(8):
            for b in range(2):
                d = (2*j + b)*4
                a.vmem(f"buffer_load_dwordx4 a[{d}:{d+3}], v{vL16}, {srd(sWS)}, s{sF[b] + (j >> 2)} offen offset:{1024*(j & 3)} sc1", ('A', j))
            if j == 0:
                a(f"v_lshrrev_b32 v{vT}, 5, v{vL}")
                a(f"v_lshlrev_b32 v{vT}, 4, v{vT}")
                a(f"v_lshl_add_u32 v{vT}, v{vM}, 10, v{vT}")
                a(f"v_cmp_gt_u32 vcc, 2, v{vM}")
                a(f"v_mov_b32 v{vT+1}, 0x7f000000")
                a(f"v_cndmask_b32 v{vT}, v{vT+1}, v{vT}, vcc")
                a(f"s_lshl_b32 s{sT0}, s{sC}, 11")
                a(f"s_lshl_b32 s{sT1}, s{sW}, 8")
                a(f"s_add_u32 s{sT0}, s{sT0}, s{sT1}")
                a(f"s_add_u32 s{sT2}, s{sT0}, {WBAR_OFF}")
            a.vmem(f"buffer_load_dwordx4 a[{64+4*j}:{67+4*j}], v{vT}, {srd(sWS)}, s{sT2} offen offset:{32*j} sc1", ('A', j))
        a(f"s_lshr_b32 s{sT0}, s{sW}, 1")
        a(f"s_add_u32 s{sT0}, s{sT0}, s{sMB0}")
        a(f"s_lshl_b32 s{sT0}, s{sT0}, 7")
        a(f"s_add_u32 s{sT0}, s{sT0}, {MEAN_OFF}")
        a(f"v_lshlrev_b32 v{vT+2}, 2, v{vM}")
        a.vmem(f"buffer_load_dword v{vMEAN1}, v{vT+2}, {srd(sWS)}, s{sT0} offen sc1", 'mean1')
        for g in self.w3_dma_groups(2): g()
        self.w24_read_addr()
        place = lambda u: 4096*u
        for f in self.w24_reads(place, 0, 0): f()
        for j in range(8):
            p = j & 1
            nxt = self.w24_reads(place, j+1, p ^ 1) if j < 7 else []
            a.wait_vm(('A', j))
            C = (lambda r: "0") if j == 0 else (lambda r: f"v[{r}:{r+15}]")
            for aa in range(2):
                a.wait_lg(('W', j, aa))
                for b in range(2):
                    k = aa + 2*b
                    d = (2*j + b)*4
                    a(f"v_mfma_f32_32x32x16_bf16 v[{32+16*k}:{47+16*k}], v[{128+8*p+4*aa}:{131+8*p+4*aa}], a[{d}:{d+3}], {C(32+16*k)}")
                    if nxt: nxt.pop(0)()
            for b in range(2):
                d = (2*j + b)*4
                a(f"v_mfma_f32_32x32x16_bf16 v[{96+16*b}:{111+16*b}], a[{64+4*j}:{67+4*j}], a[{d}:{d+3}], {C(96+16*b)}")
        self.reduce4(place)
        a(f"v_lshrrev_b32 v{vT}, 5, v{vL}")
        a(f"v_lshlrev_b32 v{vT}, 9, v{vT}")
        a(f"v_lshl_add_u32 v{vT}, v{vM}, 2, v{vT}")
        a(f"s_lshr_b32 s{sT0}, s{sW}, 1")
        a(f"s_lshl_b32 s{sT0}, s{sT0}, 7")
        a(f"s_add_u32 s{sT1}, s{sT0}, s{sL24}")
        a(f"s_add_u32 s{sT1}, s{sT1}, {4096*12}")
        a(f"v_add_u32 v{vT+1}, s{sT1}, v{vT}")
        a(f"v_xor_b32 v{vT+2}, 128, v{vT+1}")
        a("v_add_f32 v96, v96, v97")
        a("v_add_f32 v112, v112, v113")
        a.ds(f"ds_write_b32 v{vT+1}, v96", 'red')
        a.ds(f"ds_write_b32 v{vT+2}, v112", 'red')
        a.wait_lg_all()
        a("s_barrier")
        a(f"v_lshlrev_b32 v{vT+3}, 2, v{vM}")
        a(f"s_add_u32 s{sT0}, s{sT0}, {4096*12}")
        a(f"v_add_u32 v{vT+3}, s{sT0}, v{vT+3}")
        for w in range(4):
            a.ds(f"ds_read_b32 v{100+w}, v{vT+3} offset:{1024*w}", 'mp')
        self.reduce4_read(place)
        a.wait_vm('mean1')
        a.wait_lg('mp')
        a("v_add_f32 v100, v100, v101")
        a("v_add_f32 v102, v102, v103")
        a(f"v_add_f32 v100, v100, v{vMEAN1}")
        a("v_add_f32 v100, v100, v102")
        a("v_sub_f32 v100, 0, v100")
        for d in range(8):
            a(f"v_lshlrev_b32 v{48+2*d}, 16, v{vRES+d}")
            a(f"v_and_b32 v{49+2*d}, 0xffff0000, v{vRES+d}")
        for p in range(8):
            a(f"v_pk_add_f32 v[{32+2*p}:{33+2*p}], v[{32+2*p}:{33+2*p}], v[{48+2*p}:{49+2*p}]")
        for p in range(8):
            a(f"v_cvt_pk_bf16_f32 v{vRES+p}, v{32+2*p}, v{33+2*p}")
        for p in range(8):
            a(f"v_pk_add_f32 v[{32+2*p}:{33+2*p}], v[{32+2*p}:{33+2*p}], v[100:101] op_sel_hi:[1,0]")
        for p in range(8):
            a(f"v_cvt_pk_bf16_f32 v{64+p}, v{32+2*p}, v{33+2*p}")
        a(f"s_lshr_b32 s{sT0}, s{sW}, 1")
        a(f"s_add_u32 s{sT0}, s{sT0}, s{sMB0}")
        a(f"s_lshl_b32 s{sT1}, s{sT0}, 5")
        a(f"s_lshl_b32 s{sT2}, s{sCB}, 2")
        a(f"s_add_u32 s{sT1}, s{sT1}, s{sT2}")
        a(f"s_and_b32 s{sT2}, s{sW}, 1")
        a(f"s_lshl_b32 s{sT3}, s{sT2}, 1")
        a(f"s_add_u32 s{sT1}, s{sT1}, s{sT3}")
        a(f"s_lshl_b32 s{sT1}, s{sT1}, 10")
        a(f"s_add_u32 s{sT1}, s{sT1}, {HC_OFF}")
        a(f"buffer_store_dwordx4 v[64:67], v{vL16}, {srd(sWS)}, s{sT1} offen")
        a(f"buffer_store_dwordx4 v[68:71], v{vL16}, {srd(sWS)}, s{sT1} offen offset:1024")
        a("v_pk_mul_f32 v[48:49], v[32:33], v[32:33]")
        a("v_pk_mul_f32 v[50:51], v[34:35], v[34:35]")
        for p in range(2, 8):
            d = 48 + 2*(p & 1)
            a(f"v_pk_fma_f32 v[{d}:{d+1}], v[{32+2*p}:{33+2*p}], v[{32+2*p}:{33+2*p}], v[{d}:{d+1}]")
        a("v_pk_add_f32 v[48:49], v[48:49], v[50:51]")
        a("v_add_f32 v48, v48, v49")
        a("v_mov_b32 v49, v48")
        a("v_permlane32_swap_b32 v48, v49")
        a("v_add_f32 v48, v48, v49")
        a(f"s_lshl_b32 s{sT0}, s{sT0}, 11")
        a(f"s_lshl_b32 s{sT3}, s{sCB}, 1")
        a(f"s_add_u32 s{sT3}, s{sT3}, s{sT2}")
        a(f"s_lshl_b32 s{sT3}, s{sT3}, 2")
        a(f"s_add_u32 s{sT0}, s{sT0}, s{sT3}")
        a(f"s_add_u32 s{sT0}, s{sT0}, {VAR_OFF}")
        a(f"v_lshlrev_b32 v50, 6, v{vM}")
        a("s_mov_b32 exec_hi, 0")
        a(f"buffer_store_dword v48, v50, {srd(sWS)}, s{sT0} offen")
        a("s_mov_b32 exec_hi, -1")

    def p3(self):
        a = self.a
        a(f"s_lshr_b32 s{sT0}, s{sR0}, 5")
        a(f"s_add_u32 s{sT0}, s{sT0}, s{sW}")
        a(f"s_lshl_b32 s{sT3}, s{sT0}, 15")
        a(f"s_add_u32 s{sT3}, s{sT3}, {HC_OFF}")
        for s in range(32):
            if s and s % 4 == 0: a(f"s_add_u32 s{sT3}, s{sT3}, 4096")
            a.vmem(f"buffer_load_dwordx4 a[{4*s}:{4*s+3}], v{vL16}, {srd(sWS)}, s{sT3} offen offset:{1024*(s & 3)} sc1", ('A', s))
            if s == 7:
                for g in self.w3_dma_groups(3): g()
            if s == 15:
                for g in self.w3_dma_groups(4): g()
        a(f"s_lshl_b32 s{sT1}, s{sT0}, 11")
        a(f"s_add_u32 s{sT1}, s{sT1}, {VAR_OFF}")
        a(f"v_lshrrev_b32 v{vT}, 5, v{vL}")
        a(f"v_lshlrev_b32 v{vT+1}, 5, v{vT}")
        a(f"v_lshl_add_u32 v{vT+1}, v{vM}, 6, v{vT+1}")
        a.vmem(f"buffer_load_dwordx4 v[176:179], v{vT+1}, {srd(sWS)}, s{sT1} offen sc1", 'var')
        a.vmem(f"buffer_load_dwordx4 v[180:183], v{vT+1}, {srd(sWS)}, s{sT1} offen offset:16 sc1", 'var')
        a(f"v_and_b32 v{vT+1}, 15, v{vL}")
        a(f"v_lshrrev_b32 v{vT+1}, 2, v{vT+1}")
        a(f"v_lshl_add_u32 v{vT+1}, v{vT}, 2, v{vT+1}")
        a(f"v_mul_u32_u24 v{vT+1}, 224, v{vT+1}")
        a(f"v_and_b32 v{vT+2}, 3, v{vL}")
        a(f"v_lshl_add_u32 v{vT+1}, v{vT+2}, 3, v{vT+1}")
        a(f"v_bfe_u32 v{vT+2}, v{vL}, 4, 1")
        a(f"v_mul_u32_u24 v{vT+2}, {UPOFF}, v{vT+2}")
        a(f"v_add_u32 v184, v{vT+1}, v{vT+2}")
        a("v_add_u32 v185, 0x10000, v184")
        a("v_add_u32 v186, 0x20000, v184")
        def rd(s, j):
            c, t = divmod(s, 4)
            for h in range(2):
                off = SLOT[c % 5] + (16*t + 8*h)*224 + 32*j
                d = 144 + 4*j + 2*h
                a.ds(f"ds_read_b64_tr_b16 v[{d}:{d+1}], v{184 + (off >> 16)} offset:{off & 0xffff}", ('W', s, j))
        for j in range(7): rd(0, j)
        dq = []
        for s in range(32):
            c, t = divmod(s, 4)
            if t == 3:
                if c < 7: a.wait_vm(('w3', c+1))
                a("s_barrier")
                if 1 <= c <= 3: dq += self.w3_dma_groups(c + 4)
                elif c >= 4:
                    base = 7*(c - 4)
                    dq += [self.w24_dma(4, u, w4_place(u)) for u in range(base, base + 7)]
            a.wait_vm(('A', s))
            for j in range(7):
                a.wait_lg(('W', s, j))
                C = "0" if s == 0 else f"v[{32+16*j}:{47+16*j}]"
                a(f"v_mfma_f32_32x32x16_bf16 v[{32+16*j}:{47+16*j}], v[{144+4*j}:{147+4*j}], a[{4*s}:{4*s+3}], {C}")
                if s < 31: rd(s+1, j)
                if j in (1, 4) and dq: dq.pop(0)()
        while dq: dq.pop(0)()
        a("s_barrier")
        for u in range(28, 35): self.w24_dma(4, u, w4_place(u))()
        a.wait_vm('var')
        a("v_pk_add_f32 v[176:177], v[176:177], v[178:179]")
        a("v_pk_add_f32 v[180:181], v[180:181], v[182:183]")
        a("v_pk_add_f32 v[176:177], v[176:177], v[180:181]")
        a("v_add_f32 v176, v176, v177")
        a("v_mov_b32 v177, v176")
        a("v_permlane32_swap_b32 v176, v177")
        a("v_add_f32 v176, v176, v177")
        a(f"v_mul_f32 v176, {hex(f2u(1/512))}, v176")
        a(f"v_add_f32 v176, {hex(f2u(1e-5))}, v176")
        a("v_rsq_f32 v178, v176")
        a(f"v_mul_f32 v180, {hex(f2u(-LOG2E))}, v178")
        a("v_mov_b32 v182, 1.0")
        a(f"s_lshr_b32 s{sT0}, s{sR0}, 5")
        a(f"s_add_u32 s{sT0}, s{sT0}, s{sW}")
        a(f"s_mul_i32 s{sT0}, s{sT0}, 112")
        a(f"s_mul_i32 s{sT1}, s{sHP}, 7")
        a(f"s_add_u32 s{sT0}, s{sT0}, s{sT1}")
        a(f"s_lshl_b32 s{sT0}, s{sT0}, 10")
        a(f"s_add_u32 s{sT0}, s{sT0}, {HH_OFF}")
        a(f"s_add_u32 s{sT1}, s{sT0}, 4096")
        for j in range(7):
            G = 32 + 16*j; U = G + 8
            for p in range(4):
                a(f"v_pk_mul_f32 v[{G+2*p}:{G+2*p+1}], v[{G+2*p}:{G+2*p+1}], v[180:181] op_sel_hi:[1,0]")
            for r in range(8):
                a(f"v_exp_f32 v{G+r}, v{G+r}")
            for p in range(4):
                a(f"v_pk_mul_f32 v[{U+2*p}:{U+2*p+1}], v[{U+2*p}:{U+2*p+1}], v[178:179] op_sel_hi:[1,0]")
            for p in range(4):
                a(f"v_pk_add_f32 v[{G+2*p}:{G+2*p+1}], v[{G+2*p}:{G+2*p+1}], v[182:183] op_sel_hi:[1,0]")
            for r in range(8):
                a(f"v_rcp_f32 v{G+r}, v{G+r}")
            for p in range(4):
                a(f"v_pk_mul_f32 v[{U+2*p}:{U+2*p+1}], v[{U+2*p}:{U+2*p+1}], v[{G+2*p}:{G+2*p+1}]")
            d = 144 + 4*(j & 1)
            for p in range(4):
                a(f"v_cvt_pk_bf16_f32 v{d+p}, v{U+2*p}, v{U+2*p+1}")
            so = sT0 if j < 4 else sT1
            a(f"buffer_store_dwordx4 v[{d}:{d+3}], v{vL16}, {srd(sWS)}, s{so} offen offset:{1024*(j & 3)}")

    def p4(self):
        a = self.a
        sF = [92, 94]
        for b in range(2):
            a(f"s_lshr_b32 s{sT0}, s{sW}, 1")
            a(f"s_xor_b32 s{sT0}, s{sT0}, {b}")
            a(f"s_add_u32 s{sT0}, s{sT0}, s{sMB0}")
            a(f"s_mul_i32 s{sT0}, s{sT0}, 112")
            a(f"s_mul_i32 s{sT1}, s{sW}, 28")
            a(f"s_add_u32 s{sT0}, s{sT0}, s{sT1}")
            a(f"s_lshl_b32 s{sT0}, s{sT0}, 10")
            a(f"s_add_u32 s{sF[b]}, s{sT0}, {HH_OFF}")
        def ldA(s):
            for b in range(2):
                if s and s % 4 == 0: a(f"s_add_u32 s{sF[b]}, s{sF[b]}, 4096")
                d = (2*s + b)*4
                a.vmem(f"buffer_load_dwordx4 a[{d}:{d+3}], v{vL16}, {srd(sWS)}, s{sF[b]} offen offset:{1024*(s & 3)} sc1", ('A', s))
        D = 12
        for s in range(D): ldA(s)
        self.w24_read_addr()
        for f in self.w24_reads(w4_place, 0, 0): f()
        for s in range(28):
            p = s & 1
            if 2*s + 1 >= 35: a.wait_vm(('w4', 2*s + 1))
            nxt = []
            if s < 27:
                u = 2*(s+1) + 1
                if u >= 35: a.wait_vm(('w4', u))
                nxt = self.w24_reads(w4_place, s+1, p ^ 1)
            a.wait_vm(('A', s))
            C = (lambda r: "0") if s == 0 else (lambda r: f"v[{r}:{r+15}]")
            for aa in range(2):
                a.wait_lg(('W', s, aa))
                for b in range(2):
                    k = aa + 2*b
                    d = (2*s + b)*4
                    a(f"v_mfma_f32_32x32x16_bf16 v[{32+16*k}:{47+16*k}], v[{128+8*p+4*aa}:{131+8*p+4*aa}], a[{d}:{d+3}], {C(32+16*k)}")
                    if nxt: nxt.pop(0)()
            if s + D < 28: ldA(s + D)
            for u in (35 + 2*s, 36 + 2*s):
                if u < 56: self.w24_dma(4, u, w4_place(u))()
        self.reduce4(w4_place)
        a.wait_lg_all()
        a("s_barrier")
        self.reduce4_read(w4_place)
        for d in range(8):
            a(f"v_lshlrev_b32 v{48+2*d}, 16, v{vRES+d}")
            a(f"v_and_b32 v{49+2*d}, 0xffff0000, v{vRES+d}")
        for p in range(8):
            a(f"v_pk_add_f32 v[{32+2*p}:{33+2*p}], v[{32+2*p}:{33+2*p}], v[{48+2*p}:{49+2*p}]")
        for p in range(8):
            a(f"v_cvt_pk_bf16_f32 v{64+p}, v{32+2*p}, v{33+2*p}")
        for base in (64, 68):
            a(f"v_permlane32_swap_b32 v{base}, v{base+2}")
            a(f"v_permlane32_swap_b32 v{base+1}, v{base+3}")
        a(f"s_lshr_b32 s{sT0}, s{sW}, 1")
        a(f"s_add_u32 s{sT0}, s{sT0}, s{sMB0}")
        a(f"s_lshl_b32 s{sT0}, s{sT0}, 15")
        a(f"s_and_b32 s{sT1}, s{sW}, 1")
        a(f"s_lshl_b32 s{sT1}, s{sT1}, 6")
        a(f"s_add_u32 s{sT0}, s{sT0}, s{sT1}")
        a(f"s_lshl_b32 s{sT1}, s{sCB}, 7")
        a(f"s_add_u32 s{sT0}, s{sT0}, s{sT1}")
        a(f"v_lshrrev_b32 v{vT}, 5, v{vL}")
        a(f"v_lshlrev_b32 v{vT}, 4, v{vT}")
        a(f"v_lshl_add_u32 v{vT}, v{vM}, 10, v{vT}")
        a(f"buffer_store_dwordx4 v[64:67], v{vT}, {srd(sOUT)}, s{sT0} offen")
        a(f"buffer_store_dwordx4 v[68:71], v{vT}, {srd(sOUT)}, s{sT0} offen offset:32")
```

```python
import sys
from asmdsl import Asm

NAME = "sequential_preLN__sliding_local_dilated__glu_gated_glu__prompt"

O_OFF = 0
HC_OFF = 0x200000
HH_OFF = 0x400000
VAR_OFF = 0xB00000
MEAN_OFF = 0xB20000
WBAR_OFF = 0xB30000
FLAG_OFF = 0xB40000
WS_SIZE = 0xC00000

P1_STAGE = 30720
P1_WOFF = 18432
KV = 123136
KVS = 208
CS = 153088
HS = 153600
SLOT = [65536, 94336, 123136, 0, 28800]
UPOFF = 14464
LDS_TOTAL = 163840

sX, sWQ, sWO, sWGU, sWD, sOUT, sWS, sDBG = 4, 8, 12, 16, 20, 24, 28, 32
def srd(b): return f"s[{b}:{b+3}]"
sC, sI, sW, sMODE, sXCC = 36, 37, 38, 39, 40
sHM = 42
sLX, sLH, sLW = 44, 45, 46
sT0, sT1, sT2, sT3 = 47, 48, 49, 50
sR0 = 51
sL3 = 52
sL24 = 53
sW2B = 54
sW4B = 55
sM2 = 56
sM3 = 58
sEX = 60
sMB0 = 62
sCB = 63
sHP = 64
sA = 65
sB = 66
sTS = 70

vL, vM, vL16, vFLAG = 0, 1, 2, 3
vSNAP = 4
vRES = 8
vW3D = 211
vW24D = 218

LOG2E = 1.4426950408889634
def f2u(x):
    import struct
    return struct.unpack('<I', struct.pack('<f', x))[0]

import os
EXP = set(os.environ.get('EXP','').split(','))
class Gen:
    def __init__(self, stop_after=4, stamps=False, fine=0):
        self.fine = fine if stamps else 0
        self.a = Asm()
        self.stop_after = stop_after
        self.stamps = stamps
        self.nst = 0

    def stamp(self):
        if not self.stamps: return
        a = self.a
        a(f"s_memtime s[{sTS+2*self.nst}:{sTS+2*self.nst+1}]" if ('cyc' in EXP and self.nst > 0) else f"s_memrealtime s[{sTS+2*self.nst}:{sTS+2*self.nst+1}]")
        a.wait_lg_all()
        self.nst += 1

    def setup(self):
        a = self.a
        a("s_cmp_ge_u32 s2, 256")
        a("s_cbranch_scc1 L_end")
        self.stamp()
        a("s_load_dwordx4 s[96:99], s[0:1], 0")
        a("s_load_dwordx2 s[94:95], s[0:1], 16")
        a("s_load_dwordx4 s[88:91], s[0:1], 32")
        a("s_load_dwordx4 s[84:87], s[0:1], 48")
        a("s_load_dwordx4 s[80:83], s[0:1], 64")
        a(f"s_and_b32 s{sC}, s2, 7")
        a(f"s_lshr_b32 s{sI}, s2, 3")
        a(f"v_lshrrev_b32 v10, 6, v0")
        a(f"v_and_b32 v{vL}, 63, v0")
        a(f"v_readfirstlane_b32 s{sW}, v10")
        a(f"s_getreg_b32 s{sXCC}, hwreg(HW_REG_XCC_ID, 0, 4)")
        a(f"v_and_b32 v{vM}, 31, v{vL}")
        a(f"v_lshlrev_b32 v{vL16}, 4, v{vL}")
        a(f"s_and_b32 s{sT0}, s{sI}, 1")
        a(f"s_lshl_b32 s{sT0}, s{sT0}, 7")
        a(f"s_lshl_b32 s{sR0}, s{sC}, 8")
        a(f"s_add_u32 s{sR0}, s{sR0}, s{sT0}")
        a(f"s_lshr_b32 s{sHP}, s{sI}, 1")
        a(f"s_and_b32 s{sT0}, s{sI}, 3")
        a(f"s_lshl_b32 s{sT0}, s{sT0}, 1")
        a(f"s_lshl_b32 s{sMB0}, s{sC}, 3")
        a(f"s_add_u32 s{sMB0}, s{sMB0}, s{sT0}")
        a(f"s_lshr_b32 s{sCB}, s{sI}, 2")
        a(f"s_mov_b32 s{sHM}, 0x0000ffff")
        a(f"s_mov_b32 s{sHM+1}, 0x0000ffff")
        a(f"s_mov_b32 s{sM2}, 0x33333333")
        a(f"s_bitcmp1_b32 s{sI}, 0")
        a(f"s_cselect_b32 s{sM2}, 0xCCCCCCCC, s{sM2}")
        a(f"s_mov_b32 s{sM2+1}, 0")
        a(f"s_mov_b32 s{sM3}, 0x55555555")
        a(f"s_bitcmp1_b32 s{sI}, 1")
        a(f"s_cselect_b32 s{sM3}, 0xAAAAAAAA, s{sM3}")
        a(f"s_mov_b32 s{sM3+1}, 0")
        a(f"s_lshl_b32 s{sLX}, s{sW}, 12")
        a(f"s_add_u32 s{sLX}, s{sLX}, 2048")
        a(f"s_lshl_b32 s{sLH}, s{sW}, 9")
        a(f"s_mul_i32 s{sLW}, s{sW}, 3072")
        a(f"s_add_u32 s{sLW}, s{sLW}, {P1_WOFF}")
        a(f"s_lshl_b32 s{sL24}, s{sW}, 10")
        a(f"s_lshl_b32 s{sW2B}, s{sW}, 17")
        a(f"s_mul_i32 s{sW4B}, s{sW}, {448*1024}")
        a(f"s_lshr_b32 s{sT0}, s{sW}, 1")
        a(f"s_mul_i32 s{sL3}, s{sT0}, {UPOFF}")
        a(f"s_and_b32 s{sT1}, s{sW}, 1")
        a(f"s_mul_i32 s{sT1}, s{sT1}, {32*224}")
        a(f"s_add_u32 s{sL3}, s{sL3}, s{sT1}")
        a("s_waitcnt lgkmcnt(0)")
        def mk(b, lo, hi, size):
            a(f"s_mov_b32 s{b}, s{lo}")
            a(f"s_and_b32 s{b+1}, s{hi}, 0xffff")
            a(f"s_mov_b32 s{b+2}, {size}")
            a(f"s_mov_b32 s{b+3}, 0x00020000")
        mk(sX, 96, 97, 2048*1024)
        mk(sWQ, 98, 99, 512*3072)
        mk(sWO, 94, 95, 512*1024)
        a(f"s_cmp_ge_u32 s{sW}, 2")
        a(f"s_cselect_b32 s{sWGU}, s90, s88")
        a(f"s_cselect_b32 s{sWGU+1}, s91, s89")
        a(f"s_and_b32 s{sWGU+1}, s{sWGU+1}, 0xffff")
        a(f"s_mov_b32 s{sWGU+2}, {512*3584}")
        a(f"s_mov_b32 s{sWGU+3}, 0x00020000")
        mk(sWD, 84, 85, 1792*1024)
        mk(sOUT, 86, 87, 2048*1024)
        mk(sWS, 82, 83, WS_SIZE)
        mk(sDBG, 80, 81, 256)

    def p1_addr(self):
        a = self.a
        T = 220
        a(f"s_lshl_b32 s{sT0}, s{sC}, 9")
        a(f"s_add_u32 s{sT0}, s{sT0}, {FLAG_OFF}")
        a(f"v_lshlrev_b32 v{vFLAG}, 4, v{vM}")
        a(f"v_add_u32 v{vFLAG}, s{sT0}, v{vFLAG}")
        a.vmem(f"buffer_load_dwordx4 v[{vSNAP}:{vSNAP+3}], v{vFLAG}, {srd(sWS)}, 0 offen sc1", 'snap')
        a(f"v_lshrrev_b32 v{T}, 3, v{vL}")
        a(f"v_lshrrev_b32 v{T+1}, 4, v{vL}")
        a(f"v_and_b32 v{T+2}, 7, v{vL}")
        a(f"s_lshl_b32 s{sT0}, s{sW}, 5")
        a(f"s_add_u32 s{sT0}, s{sT0}, s{sR0}")
        a(f"v_add_u32 v{T+3}, s{sT0}, v{T}")
        a(f"v_lshlrev_b32 v{T+3}, 10, v{T+3}")
        a(f"v_xor_b32 v{T+4}, v{T+2}, v{T+1}")
        a(f"v_xor_b32 v{T+5}, 4, v{T+4}")
        a(f"v_lshl_add_u32 v{T+4}, v{T+4}, 4, v{T+3}")
        a(f"v_lshl_add_u32 v{T+5}, v{T+5}, 4, v{T+3}")
        for j in range(4):
            src = T+4 if j % 2 == 0 else T+5
            a(f"v_add_u32 v{176+j}, {j*(8192-1024)}, v{src}")
        a(f"s_lshl_b32 s{sT0}, s{sW}, 2")
        a(f"v_add_u32 v{T+3}, s{sT0}, v{T}")
        a(f"v_lshrrev_b32 v{T+4}, 1, v{T+3}")
        a(f"v_and_b32 v{T+4}, 7, v{T+4}")
        a(f"v_xor_b32 v{T+4}, v{T+2}, v{T+4}")
        a(f"s_sub_u32 s{sT1}, s{sR0}, 16")
        a(f"v_add_u32 v{T+3}, s{sT1}, v{T+3}")
        a(f"v_max_i32 v{T+3}, 0, v{T+3}")
        a(f"v_lshlrev_b32 v{T+3}, 10, v{T+3}")
        a(f"v_lshl_add_u32 v180, v{T+4}, 4, v{T+3}")
        a(f"s_mul_i32 s{sT0}, s{sW}, {16*3072}")
        a(f"s_lshl_b32 s{sT1}, s{sHP}, 6")
        a(f"s_add_u32 s{sT0}, s{sT0}, s{sT1}")
        for u in range(3):
            a(f"v_add_u32 v{T+3}, {64*u}, v{vL}")
            a(f"v_mul_u32_u24 v{T+4}, 43691, v{T+3}")
            a(f"v_lshrrev_b32 v{T+4}, 19, v{T+4}")
            a(f"v_mul_u32_u24 v{T+5}, 12, v{T+4}")
            a(f"v_sub_u32 v{T+5}, v{T+3}, v{T+5}")
            a(f"v_mul_u32_u24 v{T+4}, 3072, v{T+4}")
            a(f"v_lshrrev_b32 v{T+6}, 2, v{T+5}")
            a(f"v_lshl_add_u32 v{T+4}, v{T+6}, 10, v{T+4}")
            a(f"v_and_b32 v{T+5}, 3, v{T+5}")
            a(f"v_lshl_add_u32 v{T+4}, v{T+5}, 4, v{T+4}")
            a(f"v_add_u32 v{T+4}, s{sT0}, v{T+4}")
            if u: a(f"v_subrev_u32 v{181+u}, {1024*u}, v{T+4}")
            else: a(f"v_mov_b32 v{181+u}, v{T+4}")

    def p1_dma_groups(self, c):
        st = (c % 4) * P1_STAGE
        tag = ('p1', c)
        a = self.a
        def g0():
            a(f"s_add_u32 m0, s{sLX}, {st}")
            a(f"s_mov_b32 s{sA}, {c*128}")
            a.vmem(f"buffer_load_dwordx4 v176, {srd(sX)}, s{sA} offen lds", tag)
            a.vmem(f"buffer_load_dwordx4 v177, {srd(sX)}, s{sA} offen offset:1024 lds", tag)
        def g1():
            a.vmem(f"buffer_load_dwordx4 v178, {srd(sX)}, s{sA} offen offset:2048 lds", tag)
            a.vmem(f"buffer_load_dwordx4 v179, {srd(sX)}, s{sA} offen offset:3072 lds", tag)
        def g2():
            a(f"s_add_u32 m0, s{sLH}, {st}")
            a(f"s_mov_b32 s{sB}, {c*64*3072}")
            a.vmem(f"buffer_load_dwordx4 v180, {srd(sX)}, s{sA} offen lds", tag)
            a(f"s_add_u32 m0, s{sLW}, {st}")
            a("s_nop 0")
            a.vmem(f"buffer_load_dwordx4 v181, {srd(sWQ)}, s{sB} offen lds", tag)
        def g3():
            a.vmem(f"buffer_load_dwordx4 v182, {srd(sWQ)}, s{sB} offen offset:1024 lds", tag)
            a.vmem(f"buffer_load_dwordx4 v183, {srd(sWQ)}, s{sB} offen offset:2048 lds", tag)
        return [g0, g1, g2, g3]

    def w24_dma(self, which, u, ldsaddr):
        a = self.a
        S = sWO if which == 2 else sWD
        B = sW2B if which == 2 else sW4B
        def g():
            a(f"s_add_u32 m0, s{sL24}, {ldsaddr}")
            a(f"s_add_u32 s{sA}, s{B}, {u*8192}")
            a.vmem(f"buffer_load_dwordx4 v{vW24D}, {srd(S)}, s{sA} offen lds", ('w%d' % which, u))
        return g

    def w3_dma_groups(self, c):
        a = self.a
        st = SLOT[c % 5]
        tag = ('w3', c)
        def g0():
            a(f"s_add_u32 m0, s{sL3}, {st}")
            a(f"s_mov_b32 s{sB}, {c*64*3584}")
            for u in range(0, 4):
                a.vmem(f"buffer_load_dwordx4 v{vW3D+u}, {srd(sWGU)}, s{sB} offen offset:{1024*u} lds" if u else
                       f"buffer_load_dwordx4 v{vW3D}, {srd(sWGU)}, s{sB} offen lds", tag)
        def g1():
            a(f"s_add_u32 m0, s{sL3}, {st+4096}")
            a(f"s_mov_b32 s{sB}, {c*64*3584}")
            for u in range(4, 7):
                o = 1024*(u-4)
                a.vmem(f"buffer_load_dwordx4 v{vW3D+u}, {srd(sWGU)}, s{sB} offen offset:{o} lds" if o else
                       f"buffer_load_dwordx4 v{vW3D+u}, {srd(sWGU)}, s{sB} offen lds", tag)
        return [g0, g1]

    def later_addr(self):
        a = self.a
        T = 220
        a(f"s_and_b32 s{sT0}, s{sW}, 1")
        a(f"s_mul_i32 s{sT0}, s{sT0}, {32*3584}")
        a(f"s_mul_i32 s{sT1}, s{sHP}, 224")
        a(f"s_add_u32 s{sT0}, s{sT0}, s{sT1}")
        for u in range(7):
            a(f"v_add_u32 v{T+3}, {64*u}, v{vL}")
            a(f"v_mul_u32_u24 v{T+4}, 4682, v{T+3}")
            a(f"v_lshrrev_b32 v{T+4}, 16, v{T+4}")
            a(f"v_mul_u32_u24 v{T+5}, 14, v{T+4}")
            a(f"v_sub_u32 v{T+5}, v{T+3}, v{T+5}")
            a(f"v_mul_u32_u24 v{T+4}, 3584, v{T+4}")
            a(f"v_lshl_add_u32 v{T+4}, v{T+5}, 4, v{T+4}")
            a(f"v_add_u32 v{T+4}, s{sT0}, v{T+4}")
            if u & 3: a(f"v_subrev_u32 v{vW3D+u}, {1024*(u&3)}, v{T+4}")
            else: a(f"v_mov_b32 v{vW3D+u}, v{T+4}")
        a(f"v_lshrrev_b32 v{T}, 3, v{vL}")
        a(f"v_and_b32 v{T+1}, 7, v{vL}")
        a(f"v_bfe_u32 v{T+2}, v{vL}, 4, 1")
        a(f"v_lshlrev_b32 v{T+2}, 2, v{T+2}")
        a(f"v_xor_b32 v{T+1}, v{T+1}, v{T+2}")
        a(f"v_lshlrev_b32 v{T}, 10, v{T}")
        a(f"v_lshl_add_u32 v{T}, v{T+1}, 4, v{T}")
        a(f"s_lshl_b32 s{sT0}, s{sCB}, 7")
        a(f"v_add_u32 v{vW24D}, s{sT0}, v{T}")
        a(f"s_lshr_b32 s{sT0}, s{sW}, 1")
        a(f"s_add_u32 s{sT0}, s{sT0}, s{sMB0}")
        a(f"s_lshl_b32 s{sT0}, s{sT0}, 15")
        a(f"s_and_b32 s{sT1}, s{sW}, 1")
        a(f"s_lshl_b32 s{sT1}, s{sT1}, 6")
        a(f"s_add_u32 s{sT0}, s{sT0}, s{sT1}")
        a(f"s_lshl_b32 s{sT1}, s{sCB}, 7")
        a(f"s_add_u32 s{sT0}, s{sT0}, s{sT1}")
        a(f"v_lshlrev_b32 v{T}, 10, v{vM}")
        a(f"v_lshrrev_b32 v{T+1}, 5, v{vL}")
        a(f"v_lshl_add_u32 v{T}, v{T+1}, 3, v{T}")
        for jj in range(4):
            o = f" offset:{16*jj}" if jj else ""
            a.vmem(f"buffer_load_dwordx2 v[{vRES+2*jj}:{vRES+2*jj+1}], v{T}, {srd(sX)}, s{sT0} offen{o}", 'xres')
        a(f"s_lshl_b32 s{sT0}, s{sI}, 4")
        a(f"s_lshl_b32 s{sT1}, s{sW}, 2")
        a(f"s_add_u32 s{sT0}, s{sT0}, s{sT1}")
        a(f"s_lshl_b32 s{sT0}, s{sT0}, 10")
        for r in range(4):
            o = f" offset:{1024*r}" if r else ""
            a.vmem(f"buffer_load_dwordx4 v[{16+4*r}:{19+4*r}], v{vL16}, {srd(sWO)}, s{sT0} offen{o}", 'wor')

    def p1_lds_addr(self):
        a = self.a
        T = 220
        a(f"v_lshrrev_b32 v{T}, 5, v{vL}")
        a(f"v_lshrrev_b32 v{T+1}, 1, v{vM}")
        a(f"v_and_b32 v{T+1}, 7, v{T+1}")
        a(f"v_xor_b32 v{T+1}, v{T+1}, v{T}")
        a(f"v_lshlrev_b32 v{T+2}, 7, v{vM}")
        a(f"v_add_u32 v{T+2}, s{sLX}, v{T+2}")
        for t in range(4):
            a(f"v_xor_b32 v{T+3}, {2*t}, v{T+1}")
            a(f"v_lshl_add_u32 v{184+2*t}, v{T+3}, 4, v{T+2}")
            a(f"v_add_u32 v{185+2*t}, 0x10000, v{184+2*t}")
        a(f"v_and_b32 v{T+4}, 15, v{vL}")
        a(f"v_lshrrev_b32 v{T+1}, 1, v{T+4}")
        a(f"v_xor_b32 v{T+1}, v{T+1}, v{T}")
        a(f"v_lshlrev_b32 v{T+2}, 7, v{T+4}")
        for t in range(4):
            a(f"v_xor_b32 v{T+3}, {2*t}, v{T+1}")
            a(f"v_lshl_add_u32 v{192+2*t}, v{T+3}, 4, v{T+2}")
            a(f"v_add_u32 v{193+2*t}, 0x10000, v{192+2*t}")
        a(f"s_lshl_b32 s{sT0}, s{sW}, 1")
        a(f"v_xor_b32 v{T+3}, s{sT0}, v{T+1}")
        a(f"v_lshl_add_u32 v200, v{T+3}, 4, v{T+2}")
        a(f"v_add_u32 v201, 0x10000, v200")
        a(f"v_lshrrev_b32 v{T+1}, 2, v{T+4}")
        a(f"v_lshl_add_u32 v{T+1}, v{T}, 3, v{T+1}")
        a(f"v_mul_u32_u24 v{T+1}, 192, v{T+1}")
        a(f"v_bfe_u32 v{T+2}, v{vL}, 4, 1")
        a(f"v_lshl_add_u32 v{T+1}, v{T+2}, 5, v{T+1}")
        a(f"v_and_b32 v{T+2}, 3, v{vL}")
        a(f"v_lshl_add_u32 v202, v{T+2}, 3, v{T+1}")
        a(f"v_add_u32 v203, 0x10000, v202")
        a(f"s_min_u32 s{sT0}, s{sW}, 2")
        a(f"s_lshl_b32 s{sT0}, s{sT0}, 6")
        a(f"v_add_u32 v204, s{sT0}, v202")
        a(f"v_add_u32 v205, 0x10000, v204")
        for r in (206, 207, 208, 209): a(f"v_mov_b32 v{r}, 0")
        a("v_mov_b32 v210, 0x3f803f80")
        for r in range(128, 136): a(f"v_mov_b32 v{r}, 0x3f803f80")

    @staticmethod
    def win(base2, off):
        w = off >> 16
        assert w in (0, 1), off
        return base2 + w, off & 0xffff

    def p1_reads(self, s):
        a = self.a
        c, t = divmod(s, 4)
        st = (c % 4) * P1_STAGE
        xb = 96 + 4*((c & 1)*4 + t)
        hb = 128 + 4*(s & 1)
        wb = 144 + 16*(s & 1)
        def rdX():
            r, o = self.win(184 + 2*t, st)
            a.ds(f"ds_read_b128 v[{xb}:{xb+3}], v{r} offset:{o}", ('X', s))
        def rdW(blk, h):
            def f():
                r, o = self.win(202, st + P1_WOFF + (16*t + 4*h)*192 + 64*blk)
                d = wb + 4*blk + 2*h
                a.ds(f"ds_read_b64_tr_b16 v[{d}:{d+1}], v{r} offset:{o}", ('W%d' % blk, s))
            return f
        def rdWh(h):
            def f():
                r, o = self.win(204, st + P1_WOFF + (16*t + 4*h)*192)
                d = wb + 12 + 2*h
                a.ds(f"ds_read_b64_tr_b16 v[{d}:{d+1}], v{r} offset:{o}", ('Wh', s))
            return f
        def rdH():
            r, o = self.win(192 + 2*t, st)
            a(f"s_mov_b64 exec, s[{sHM}:{sHM+1}]")
            a.ds(f"ds_read_b128 v[{hb}:{hb+3}], v{r} offset:{o}", ('H', s))
            a("s_mov_b64 exec, -1")
        def rdHs():
            r, o = self.win(200, st)
            d = 136 + 4*(c & 1)
            a.ds(f"ds_read_b128 v[{d}:{d+3}], v{r} offset:{o}", ('Hs', c))
        g = [[rdX, rdW(0, 0), rdW(0, 1)], [rdW(1, 0), rdW(1, 1), rdH], [rdW(2, 0), rdW(2, 1)], [rdWh(0), rdWh(1)]]
        if t == 0: g[3].append(rdHs)
        return g

    def p1_main(self):
        a = self.a
        self.p1_addr()
        for c in range(4):
            for g in self.p1_dma_groups(c): g()
        self.later_addr()
        self.p1_lds_addr()
        if self.fine == 1: self.stamp()
        a.wait_vm(('p1', 0))
        a("s_barrier")
        if self.fine == 1: self.stamp()
        a(f"s_lshl_b32 s{sT0}, s{sC}, 5")
        a(f"s_add_u32 s{sT0}, s{sT0}, s{sI}")
        a(f"s_cmp_eq_u32 s{sW}, 0")
        a(f"s_cselect_b32 s{sT0}, s{sT0}, 0x10000")
        a(f"s_or_b32 s{sT1}, s{sXCC}, 0x40")
        a(f"v_mov_b32 v220, s{sT0}")
        a(f"v_mov_b32 v221, s{sT1}")
        a("s_mov_b64 exec, 1")
        a.vmem(f"buffer_store_byte v221, v220, {srd(sDBG)}, 0 offen", 'reg')
        a("s_mov_b64 exec, -1")
        for g in self.p1_reads(0):
            for f in g: f()
        dq = []
        for s in range(32):
            c, t = divmod(s, 4)
            xb = 96 + 4*((c & 1)*4 + t)
            hb = 128 + 4*(s & 1)
            wb = 144 + 16*(s & 1)
            if t == 3:
                a.wait_lg(('Wh', s))
                if c < 7: a.wait_vm(('p1', c+1))
                a("s_barrier")
                if self.fine == 1: self.stamp()
                if c + 4 < 8: dq += self.p1_dma_groups(c + 4)
                elif c == 4: dq += [self.w24_dma(2, u, 4096*u) for u in range(0, 7)]
                elif c == 5: dq += [self.w24_dma(2, u, 4096*u) for u in range(7, 15)]
                elif c == 6: dq += [self.w24_dma(2, 15, 4096*15)]
                elif c == 7: dq += self.w3_dma_groups(0) + self.w3_dma_groups(1)
            nxt = self.p1_reads(s+1) if s < 31 else [[], [], [], []]
            C = (lambda r: "0") if s == 0 else (lambda r: f"v[{r}:{r+15}]")
            a.wait_lg(('W0', s))
            a(f"v_mfma_f32_32x32x16_bf16 v[32:47], v[{wb}:{wb+3}], v[{xb}:{xb+3}], {C(32)}")
            for f in nxt[0]: f()
            a.wait_lg(('W1', s))
            a(f"v_mfma_f32_32x32x16_bf16 v[48:63], v[{wb+4}:{wb+7}], v[{xb}:{xb+3}], {C(48)}")
            for f in nxt[1]: f()
            if dq and 'nodma' not in EXP: dq.pop(0)()
            a.wait_lg(('W2', s))
            a(f"v_mfma_f32_32x32x16_bf16 v[64:79], v[{wb+8}:{wb+11}], v[{xb}:{xb+3}], {C(64)}")
            for f in nxt[2]: f()
            a.wait_lg(('Wh', s))
            a(f"v_mfma_f32_32x32x16_bf16 v[80:95], v[{wb+12}:{wb+15}], v[{hb}:{hb+3}], {C(80)}")
            for f in nxt[3]: f()
            if c >= 4 and dq and 'nodma' not in EXP: dq.pop(0)()
            if t == 3 and 'nodot' not in EXP:
                a.wait_lg(('Hs', c))
                for tt in range(4):
                    b = 96 + 4*((c & 1)*4 + tt)
                    for k in range(4):
                        a(f"v_dot2c_f32_bf16 v206, v{b+k}, v210")
                        a(f"v_dot2c_f32_bf16 v207, v{b+k}, v{b+k}")
                d = 136 + 4*(c & 1)
                for k in range(4):
                    a(f"v_dot2c_f32_bf16 v208, v{d+k}, v210")
                    a(f"v_dot2c_f32_bf16 v209, v{d+k}, v{d+k}")
        while dq and 'nodma' not in EXP: dq.pop(0)()

    def row_stats(self, vs, vq, vmean, vrstd, t0):
        a = self.a
        a(f"v_mul_f32 v{vmean}, {hex(f2u(1/512))}, v{vs}")
        a(f"v_mul_f32 v{t0}, {hex(f2u(1/512))}, v{vq}")
        a(f"v_fma_f32 v{t0}, -v{vmean}, v{vmean}, v{t0}")
        a(f"v_max_f32 v{t0}, 0, v{t0}")
        a(f"v_add_f32 v{t0}, {hex(f2u(1e-5))}, v{t0}")
        a(f"v_rsq_f32 v{vrstd}, v{t0}")

    def half_total(self, vs, vq, t):
        a = self.a
        a(f"v_permlane32_swap_b32 v{vs}, v{vq}")
        a(f"v_add_f32 v{vs}, v{vs}, v{vq}")
        a(f"v_mov_b32 v{t}, v{vs}")
        a(f"v_permlane32_swap_b32 v{vs}, v{t}")
        return vs, t

    def p1_epilogue(self):
        a = self.a
        MEAN, RSTD = 224, 226
        vs, vq = self.half_total(206, 207, 220)
        self.row_stats(vs, vq, 228, RSTD, 221)
        a(f"v_sub_f32 v{MEAN}, 0, v228")
        hs, hq = self.half_total(208, 209, 230)
        a(f"v_mov_b32 v209, v230")
        a(f"v_and_b32 v231, 15, v{vL}")
        a(f"v_lshlrev_b32 v231, 3, v231")
        a(f"s_lshl_b32 s{sT0}, s{sW}, 7")
        a(f"s_add_u32 s{sT0}, s{sT0}, {HS}")
        a(f"v_add_u32 v232, s{sT0}, v231")
        a("s_mov_b32 exec_lo, 0xffff")
        a("s_mov_b32 exec_hi, 0")
        a.ds(f"ds_write_b64 v232, v[208:209]", 'e')
        a("s_mov_b64 exec, -1")
        a(f"v_lshrrev_b32 v233, 5, v{vL}")
        a(f"v_lshlrev_b32 v234, 6, v233")
        a(f"s_lshl_b32 s{sT0}, s{sW}, 7")
        a(f"s_add_u32 s{sT0}, s{sT0}, {CS}")
        a(f"v_add_u32 v235, s{sT0}, v234")
        a(f"s_mov_b32 s{sEX}, 0x10000")
        a(f"s_mov_b32 s{sEX+1}, 0x10000")
        a(f"s_mov_b64 exec, s[{sEX}:{sEX+1}]")
        for jj in range(4):
            a.ds(f"ds_write_b128 v235, v[{80+4*jj}:{83+4*jj}] offset:{16*jj}", 'e')
        a("s_mov_b64 exec, -1")
        a.wait_lg_all()
        a("s_barrier")
        a(f"v_add_u32 v236, {CS}, v234")
        for blk in range(3):
            for jj in range(4):
                d = 96 + 16*blk + 4*jj
                a.ds(f"ds_read_b128 v[{d}:{d+3}], v236 offset:{128*blk+16*jj}", ('cs', blk))
        a(f"s_min_u32 s{sT0}, s{sW}, 2")
        a(f"s_lshl_b32 s{sT0}, s{sT0}, 7")
        a(f"v_add_u32 v237, s{sT0}, v236")
        for jj in range(4):
            d = 144 + 4*jj
            a.ds(f"ds_read_b128 v[{d}:{d+3}], v237 offset:{16*jj}", 'csh')
        a(f"v_add_u32 v238, {HS}, v231")
        for w in range(4):
            a.ds(f"ds_read_b64 v[{160+2*w}:{161+2*w}], v238 offset:{128*w}", 'hs')
        a(f"s_lshl_b32 s{sT0}, s{sW}, 5")
        a(f"s_add_u32 s{sT0}, s{sT0}, 16")
        a(f"v_add_u32 v240, s{sT0}, v{vM}")
        a(f"v_mul_u32_u24 v240, {KVS}, v240")
        a(f"v_add_u32 v240, {KV}, v240")
        a(f"v_lshl_add_u32 v241, v233, 4, v240")
        a(f"v_lshl_add_u32 v242, v233, 5, v240")
        def scale(base, csb, neg, rs):
            for p in range(8):
                a(f"v_pk_fma_f32 v[{base+2*p}:{base+2*p+1}], v[{csb+2*p}:{csb+2*p+1}], v[{neg}:{neg+1}], v[{base+2*p}:{base+2*p+1}] op_sel_hi:[1,0,1]")
            for p in range(8):
                a(f"v_pk_mul_f32 v[{base+2*p}:{base+2*p+1}], v[{base+2*p}:{base+2*p+1}], v[{rs}:{rs+1}] op_sel_hi:[1,0]")
        a.wait_lg(('cs', 1))
        scale(48, 112, MEAN, RSTD)
        for p in range(8):
            a(f"v_cvt_pk_bf16_f32 v{168+p}, v{48+2*p}, v{49+2*p}")
        a.ds(f"ds_write_b128 v241, v[168:171]", 'kv')
        a.ds(f"ds_write_b128 v241, v[172:175] offset:32", 'kv')
        a.wait_lg(('cs', 2))
        scale(64, 128, MEAN, RSTD)
        for hd in range(2):
            for q in range(2):
                b = 64 + 8*hd + 4*q
                a.ds(f"ds_write_b128 v242, v[{b}:{b+3}] offset:{64+64*hd+16*q}", 'kv')
        scale(32, 96, MEAN, RSTD)
        for p in range(8):
            a(f"v_cvt_pk_bf16_f32 v{176+p}, v{32+2*p}, v{33+2*p}")
        a.wait_lg('hs')
        a("v_pk_add_f32 v[160:161], v[160:161], v[162:163]")
        a("v_pk_add_f32 v[164:165], v[164:165], v[166:167]")
        a("v_pk_add_f32 v[160:161], v[160:161], v[164:165]")
        self.row_stats(160, 161, 162, 246, 163)
        a("v_sub_f32 v244, 0, v162")
        scale(80, 144, 244, 246)
        a(f"v_and_b32 v239, 15, v{vL}")
        a(f"v_mul_u32_u24 v239, {KVS}, v239")
        a(f"v_add_u32 v239, {KV}, v239")
        Lk, Lv, Ld = a.newlabel(), a.newlabel(), a.newlabel()
        a(f"s_cmp_eq_u32 s{sW}, 1")
        a(f"s_cbranch_scc1 {Lk}")
        a(f"s_cmp_eq_u32 s{sW}, 2")
        a(f"s_cbranch_scc0 {Ld}")
        a(f"v_lshl_add_u32 v239, v233, 5, v239")
        a(f"s_mov_b64 exec, s[{sHM}:{sHM+1}]")
        for hd in range(2):
            for q in range(2):
                b = 80 + 8*hd + 4*q
                a(f"ds_write_b128 v239, v[{b}:{b+3}] offset:{64+64*hd+16*q}")
        a("s_mov_b64 exec, -1")
        a(f"s_branch {Ld}")
        a.label(Lk)
        for p in range(8):
            a(f"v_cvt_pk_bf16_f32 v{168+p}, v{80+2*p}, v{81+2*p}")
        a(f"v_lshl_add_u32 v239, v233, 4, v239")
        a(f"s_mov_b64 exec, s[{sHM}:{sHM+1}]")
        a(f"ds_write_b128 v239, v[168:171]")
        a(f"ds_write_b128 v239, v[172:175] offset:32")
        a("s_mov_b64 exec, -1")
        a.label(Ld)
        a.wait_lg_all()
        a("s_barrier")
        a(f"v_subrev_u32 v241, {14*KVS}, v241")
        a(f"v_lshl_add_u32 v242, v233, 6, v240")
        a(f"v_subrev_u32 v242, {14*KVS-64}, v242")
        for j in range(8):
            for hd in range(2):
                d = 96 + 8*j + 4*hd
                a.ds(f"ds_read_b128 v[{d}:{d+3}], v241 offset:{(14-2*j)*KVS + 32*hd}", ('K', j, hd))
        for j in range(8):
            for hd in range(2):
                a.wait_lg(('K', j, hd))
                d = 96 + 8*j + 4*hd
                L = 32 + 8*hd + j
                q = 176 + 4*hd
                a(f"v_dot2_f32_bf16 v{L}, v{q}, v{d}, 0")
                for k in range(1, 4):
                    a(f"v_dot2c_f32_bf16 v{L}, v{q+k}, v{d+k}")
        def rdV(j):
            for q in range(4):
                d = 96 + 16*(j & 3) + 4*q
                a.ds(f"ds_read_b128 v[{d}:{d+3}], v242 offset:{(14-2*j)*KVS + 16*q}", ('V', j))
        for j in range(8):
            a(f"v_permlane32_swap_b32 v{32+j}, v{40+j}")
        for j in range(3): rdV(j)
        for j in range(8):
            a(f"v_add_f32 v{32+j}, v{32+j}, v{40+j}")
        Lm = a.newlabel()
        a(f"s_lshl_b32 s{sT0}, s{sW}, 5")
        a(f"s_add_u32 s{sT0}, s{sT0}, s{sR0}")
        a(f"s_cmp_lg_u32 s{sT0}, 0")
        a(f"s_cbranch_scc1 {Lm}")
        a(f"v_mov_b32 v48, {hex(f2u(-1e30))}")
        for j in range(1, 8):
            a(f"v_cmp_gt_u32 vcc, {2*j}, v{vM}")
            a(f"v_cndmask_b32 v{32+j}, v{32+j}, v48, vcc")
        a.label(Lm)
        a("v_max3_f32 v48, v32, v33, v34")
        a("v_max3_f32 v48, v48, v35, v36")
        a("v_max3_f32 v48, v48, v37, v38")
        a("v_max_f32 v48, v48, v39")
        cc = 0.25*LOG2E
        a(f"s_mov_b32 s{sT0}, {hex(f2u(cc))}")
        a(f"v_mul_f32 v49, s{sT0}, v48")
        for j in range(8):
            a(f"v_fma_f32 v{32+j}, v{32+j}, s{sT0}, -v49")
        for j in range(8):
            a(f"v_exp_f32 v{32+j}, v{32+j}")
        a("v_pk_add_f32 v[40:41], v[32:33], v[34:35]")
        a("v_pk_add_f32 v[42:43], v[36:37], v[38:39]")
        a("v_pk_add_f32 v[40:41], v[40:41], v[42:43]")
        a("v_add_f32 v40, v40, v41")
        a("v_rcp_f32 v50, v40")
        for j in range(8):
            if j + 3 < 8: rdV(j + 3)
            a.wait_lg(('V', j))
            b = 96 + 16*(j & 3)
            pr = 32 + (j & ~1)
            sel = "op_sel:[0,1,0] op_sel_hi:[1,1,1]" if (j & 1) else "op_sel_hi:[1,0,1]"
            selm = "op_sel:[0,1] op_sel_hi:[1,1]" if (j & 1) else "op_sel_hi:[1,0]"
            for p in range(8):
                if j == 0:
                    a(f"v_pk_mul_f32 v[{64+2*p}:{65+2*p}], v[{b+2*p}:{b+2*p+1}], v[{pr}:{pr+1}] {selm}")
                else:
                    a(f"v_pk_fma_f32 v[{64+2*p}:{65+2*p}], v[{b+2*p}:{b+2*p+1}], v[{pr}:{pr+1}], v[{64+2*p}:{65+2*p}] {sel}")
        for p in range(8):
            a(f"v_pk_mul_f32 v[{64+2*p}:{65+2*p}], v[{64+2*p}:{65+2*p}], v[50:51] op_sel_hi:[1,0]")
        for p in range(8):
            a(f"v_cvt_pk_bf16_f32 v{80+p}, v{64+2*p}, v{65+2*p}")
        for k in range(4):
            a(f"v_permlane32_swap_b32 v{80+k}, v{84+k}")
        a.wait_vm('wor')
        for r in range(4):
            a(f"v_dot2_f32_bf16 v{52+r}, v{16+4*r}, v210, 0")
            for k in range(1, 4):
                a(f"v_dot2c_f32_bf16 v{52+r}, v{16+4*r+k}, v210")
        a("v_permlane32_swap_b32 v52, v53")
        a("v_permlane32_swap_b32 v54, v55")
        a("v_add_f32 v52, v52, v53")
        a("v_add_f32 v54, v54, v55")
        a("v_permlane16_swap_b32 v52, v54")
        a("v_add_f32 v52, v52, v54")
        for rot in (8, 4, 2, 1):
            a(f"v_add_f32_dpp v52, v52, v52 row_ror:{rot} row_mask:0xf bank_mask:0xf")
        a(f"v_mul_f32 v52, {hex(f2u(1/512))}, v52")
        a("v_cvt_pk_bf16_f32 v53, v52, v52")
        a("v_lshlrev_b32 v54, 16, v53")
        a("v_sub_f32 v54, v52, v54")
        a("v_cvt_pk_bf16_f32 v54, v54, v54")
        a(f"v_lshrrev_b32 v55, 4, v{vL}")
        a("v_lshrrev_b32 v56, 1, v55")
        a("v_and_b32 v55, 1, v55")
        a("v_lshl_or_b32 v55, v55, 1, v56")
        a(f"s_lshr_b32 s{sT0}, s{sW}, 1")
        a(f"s_lshl_b32 s{sT0}, s{sT0}, 3")
        a(f"s_and_b32 s{sT1}, s{sW}, 1")
        a(f"s_lshl_b32 s{sT1}, s{sT1}, 4")
        a(f"s_add_u32 s{sT0}, s{sT0}, s{sT1}")
        a(f"s_lshl_b32 s{sT1}, s{sI}, 5")
        a(f"s_add_u32 s{sT0}, s{sT0}, s{sT1}")
        a(f"s_lshl_b32 s{sT1}, s{sC}, 11")
        a(f"s_add_u32 s{sT0}, s{sT0}, s{sT1}")
        a(f"s_add_u32 s{sT0}, s{sT0}, {WBAR_OFF}")
        a(f"v_lshlrev_b32 v55, 1, v55")
        a(f"v_add_u32 v55, s{sT0}, v55")
        a(f"s_lshl_b32 s{sT0}, s{sW}, 5")
        a(f"s_add_u32 s{sT0}, s{sT0}, s{sR0}")
        a(f"s_lshl_b32 s{sT0}, s{sT0}, 2")
        a(f"s_add_u32 s{sT0}, s{sT0}, {MEAN_OFF}")
        a(f"s_cmp_eq_u32 s{sHP}, 0")
        a(f"s_cselect_b32 s{sT0}, s{sT0}, 0x7f000000")
        a(f"v_lshlrev_b32 v56, 2, v{vM}")
        a(f"v_add_u32 v56, s{sT0}, v56")
        a(f"s_lshr_b32 s{sT0}, s{sR0}, 5")
        a(f"s_add_u32 s{sT0}, s{sT0}, s{sW}")
        a(f"s_lshl_b32 s{sT0}, s{sT0}, 5")
        a(f"s_lshl_b32 s{sT1}, s{sHP}, 1")
        a(f"s_add_u32 s{sT0}, s{sT0}, s{sT1}")
        a(f"s_lshl_b32 s{sT2}, s{sT0}, 10")
        a(f"buffer_store_dwordx4 v[80:83], v{vL16}, {srd(sWS)}, s{sT2} offen")
        a(f"buffer_store_dwordx4 v[84:87], v{vL16}, {srd(sWS)}, s{sT2} offen offset:1024")
        a(f"s_mov_b32 s{sEX}, 0x00010001")
        a(f"s_mov_b32 s{sEX+1}, 0x00010001")
        a(f"s_mov_b64 exec, s[{sEX}:{sEX+1}]")
        a(f"buffer_store_short v53, v55, {srd(sWS)}, 0 offen")
        a(f"buffer_store_short v54, v55, {srd(sWS)}, 0 offen offset:1024")
        a("s_mov_b32 exec_lo, -1")
        a("s_mov_b32 exec_hi, 0")
        a(f"buffer_store_dword v228, v56, {srd(sWS)}, 0 offen")
        a("s_mov_b64 exec, -1")

    def barrier1(self):
        a = self.a
        a.wait_vm_all()
        a("s_barrier")
        Lw, Lslow, Lp, Lp2, Lq, Ldone = (a.newlabel() for _ in range(6))
        a(f"s_cmp_lg_u32 s{sW}, 0")
        a(f"s_cbranch_scc1 {Lw}")
        a(f"s_lshl_b32 s{sT3}, s{sC}, 5")
        a(f"v_and_b32 v222, 7, v{vL}")
        a(f"v_lshlrev_b32 v222, 2, v222")
        a(f"buffer_load_dword v223, v222, {srd(sDBG)}, s{sT3} offen sc1")
        a(f"s_add_u32 s{sT0}, s{sT3}, s{sI}")
        a(f"v_mov_b32 v220, s{sT0}")
        a(f"s_mul_i32 s{sT2}, s{sXCC}, 0x01010101")
        a(f"s_or_b32 s{sT1}, s{sT2}, 0x40404040")
        a("s_waitcnt vmcnt(0)")
        a("v_and_b32 v224, 0x4f4f4f4f, v223")
        a(f"v_cmp_ne_u32 vcc, s{sT1}, v224")
        a("s_and_b32 vcc_lo, vcc_lo, 0xff")
        a(f"s_cbranch_scc1 {Lslow}")
        a(f"s_mov_b32 s{sMODE}, 0")
        a(f"s_or_b32 s{sT0}, s{sXCC}, 0x60")
        a(f"v_mov_b32 v221, s{sT0}")
        a("s_mov_b64 exec, 1")
        a(f"buffer_store_byte v221, v220, {srd(sDBG)}, 0 offen")
        a("s_mov_b64 exec, -1")
        a.label(Lp)
        a(f"buffer_load_dword v223, v222, {srd(sDBG)}, s{sT3} offen sc1")
        a("s_waitcnt vmcnt(0)")
        a("v_and_b32 v224, 0x20202020, v223")
        a("v_cmp_ne_u32 vcc, 0x20202020, v224")
        a("s_and_b32 vcc_lo, vcc_lo, 0xff")
        a(f"s_cbranch_scc1 {Lp}")
        a(f"s_branch {Ldone}")
        a.label(Lslow)
        a("buffer_wbl2 sc1")
        a("s_waitcnt vmcnt(0)")
        a(f"s_or_b32 s{sT0}, s{sXCC}, 0xe0")
        a(f"v_mov_b32 v221, s{sT0}")
        a("s_mov_b64 exec, 1")
        a(f"buffer_store_byte v221, v220, {srd(sDBG)}, 0 offen sc1")
        a("s_mov_b64 exec, -1")
        a.label(Lp2)
        a(f"buffer_load_dword v223, v222, {srd(sDBG)}, s{sT3} offen sc1")
        a("s_waitcnt vmcnt(0)")
        a(f"v_xor_b32 v224, s{sT2}, v223")
        a("v_and_b32 v224, 0x0f0f0f0f, v224")
        a("v_add_u32 v224, 0x0f0f0f0f, v224")
        a("v_and_b32 v224, 0x10101010, v224")
        a("v_xor_b32 v225, 0x10101010, v224")
        a("v_lshrrev_b32 v226, 1, v223")
        a("v_and_b32 v225, v225, v226")
        a("v_lshrrev_b32 v226, 3, v223")
        a("v_or_b32 v225, v225, v226")
        a("v_and_b32 v225, 0x10101010, v225")
        a("v_cmp_ne_u32 vcc, 0x10101010, v225")
        a("s_and_b32 vcc_lo, vcc_lo, 0xff")
        a(f"s_cbranch_scc1 {Lp2}")
        a("v_cmp_ne_u32 vcc, 0, v224")
        a("s_and_b32 vcc_lo, vcc_lo, 0xff")
        a(f"s_cselect_b32 s{sMODE}, 1, 0")
        a("buffer_inv sc1")
        a("s_waitcnt vmcnt(0)")
        a.label(Ldone)
        a.label(Lw)
        a("s_barrier")

    def cbarrier(self, bar, mask):
        a = self.a
        a.wait_vm_all()
        a("s_barrier")
        Lw, Lp, Ls, Lf, Le = (a.newlabel() for _ in range(5))
        a(f"s_cmp_lg_u32 s{sW}, 0")
        a(f"s_cbranch_scc1 {Lw}")
        a(f"v_add_u32 v{vSNAP+bar}, 1, v{vSNAP+bar}")
        a(f"s_lshl_b64 s[{sEX}:{sEX+1}], 1, s{sI}")
        a(f"s_cmp_lg_u32 s{sMODE}, 0")
        a(f"s_cbranch_scc1 {Ls}")
        a(f"s_mov_b64 exec, s[{sEX}:{sEX+1}]")
        a(f"buffer_store_dword v{vSNAP+bar}, v{vFLAG}, {srd(sWS)}, 0 offen offset:{4*bar}")
        a(f"s_branch {Lf}")
        a.label(Ls)
        a("buffer_wbl2 sc1")
        a("s_waitcnt vmcnt(0)")
        a(f"s_mov_b64 exec, s[{sEX}:{sEX+1}]")
        a(f"buffer_store_dword v{vSNAP+bar}, v{vFLAG}, {srd(sWS)}, 0 offen offset:{4*bar} sc1")
        a.label(Lf)
        a("s_mov_b64 exec, -1")
        a.label(Lp)
        a(f"buffer_load_dword v220, v{vFLAG}, {srd(sWS)}, 0 offen offset:{4*bar} sc1")
        a("s_waitcnt vmcnt(0)")
        a(f"v_cmp_ne_u32 vcc, v220, v{vSNAP+bar}")
        a(f"s_and_b32 vcc_lo, vcc_lo, s{mask}")
        a(f"s_cbranch_scc1 {Lp}")
        a(f"s_cmp_lg_u32 s{sMODE}, 0")
        a(f"s_cbranch_scc0 {Le}")
        a("buffer_inv sc1")
        a("s_waitcnt vmcnt(0)")
        a.label(Le)
        a.label(Lw)
        a("s_barrier")

    def finish(self):
        a = self.a
        if self.stamps:
            self.stamp()
            a("s_waitcnt lgkmcnt(0)")
            a(f"s_lshl_b32 s{sT0}, s2, 2")
            a(f"s_add_u32 s{sT0}, s{sT0}, s{sW}")
            a(f"s_lshl_b32 s{sT0}, s{sT0}, 6")
            a(f"s_add_u32 s{sT0}, s{sT0}, {FLAG_OFF+0x10000}")
            for k in range(self.nst):
                a(f"v_mov_b32 v{220+k}, s{sTS+2*k}")
            a(f"v_mov_b32 v219, 0")
            a("s_mov_b64 exec, 1")
            for k in range(self.nst):
                a(f"buffer_store_dword v{220+k}, v219, {srd(sWS)}, s{sT0} offen offset:{4*k}")
            a("s_mov_b64 exec, -1")
        a("s_waitcnt vmcnt(0)")
        a.label("L_end")
        a("s_endpgm")

    def build(self):
        a = self.a
        self.setup()
        self.p1_main()
        self.stamp()
        self.p1_epilogue()
        self.stamp()
        if self.stop_after >= 2:
            self.barrier1()
            self.stamp()
            self.p2()
            self.stamp()
        if self.stop_after >= 3:
            self.cbarrier(0, sM2)
            self.stamp()
            self.p3()
            self.stamp()
        if self.stop_after >= 4:
            self.cbarrier(1, sM3)
            self.stamp()
            self.p4()
        self.finish()
        body = a.finalize(verbose=True)
        hdr = open('cdna_kernels/%s.s.ref' % NAME).read().split('\n')
        head = [l for l in hdr if l.startswith(';') and '@launch' not in l and 'Override' not in l and 'grid=ceil' not in l]
        txt = '\n'.join(head[:13]) + '\n'
        txt += f"; @launch grid=(256,1,1) block=(256,1,1) lds={LDS_TOTAL}\n"
        txt += '.amdgcn_target "amdgcn-amd-amdhsa--gfx950"\n.text\n'
        txt += f".globl {NAME}_kernel\n.p2align 8\n.type {NAME}_kernel,@function\n{NAME}_kernel:\n"
        txt += body
        txt += f'''.section .rodata,"a"
.p2align 6
.amdhsa_kernel {NAME}_kernel
  .amdhsa_next_free_vgpr 512
  .amdhsa_next_free_sgpr 102
  .amdhsa_accum_offset 256
  .amdhsa_group_segment_fixed_size 0
  .amdhsa_kernarg_size 80
  .amdhsa_user_sgpr_count 2
  .amdhsa_user_sgpr_kernarg_segment_ptr 1
  .amdhsa_system_sgpr_workgroup_id_x 1
.end_amdhsa_kernel
'''
        return txt

if __name__ == "__main__":
    import argparse
    ap = argparse.ArgumentParser()
    ap.add_argument('--stop', type=int, default=4)
    ap.add_argument('--stamps', action='store_true')
    ap.add_argument('--fine', type=int, default=0)
    ap.add_argument('-o', default='k.s')
    args = ap.parse_args()
    from gen2 import Gen2
    g = Gen2(args.stop, args.stamps, args.fine)
    open(args.o, 'w').write(g.build())
```

```python
import sys
from asmdsl import Asm

NAME = "sequential_preLN__sliding_local_dilated__glu_gated_glu__prompt"

O_OFF = 0
HC_OFF = 0x200000
HH_OFF = 0x400000
VAR_OFF = 0xB00000
MEAN_OFF = 0xB20000
WBAR_OFF = 0xB30000
FLAG_OFF = 0xB40000
WS_SIZE = 0xC00000

P1_STAGE = 30720
P1_WOFF = 18432
KV = 123136
KVS = 208
CS = 153088
HS = 153600
SLOT = [65536, 94336, 123136, 0, 28800]
UPOFF = 14464
LDS_TOTAL = 163840

sX, sWQ, sWO, sWGU, sWD, sOUT, sWS, sDBG = 4, 8, 12, 16, 20, 24, 28, 32
def srd(b): return f"s[{b}:{b+3}]"
sC, sI, sW, sMODE, sXCC = 36, 37, 38, 39, 40
sHM = 42
sLX, sLH, sLW = 44, 45, 46
sT0, sT1, sT2, sT3 = 47, 48, 49, 50
sR0 = 51
sL3 = 52
sL24 = 53
sW2B = 54
sW4B = 55
sM2 = 56
sM3 = 58
sEX = 60
sMB0 = 62
sCB = 63
sHP = 64
sA = 65
sB = 66
sTS = 70

vL, vM, vL16, vFLAG = 0, 1, 2, 3
vSNAP = 4
vRES = 8
vW3D = 211
vW24D = 218

LOG2E = 1.4426950408889634
def f2u(x):
    import struct
    return struct.unpack('<I', struct.pack('<f', x))[0]

import os
EXP = set(os.environ.get('EXP','').split(','))
class Gen:
    def __init__(self, stop_after=4, stamps=False, fine=0):
        self.fine = fine if stamps else 0
        self.a = Asm()
        self.stop_after = stop_after
        self.stamps = stamps
        self.nst = 0

    def stamp(self):
        if not self.stamps: return
        a = self.a
        a(f"s_memtime s[{sTS+2*self.nst}:{sTS+2*self.nst+1}]" if ('cyc' in EXP and self.nst > 0) else f"s_memrealtime s[{sTS+2*self.nst}:{sTS+2*self.nst+1}]")
        a.wait_lg_all()
        self.nst += 1

    def setup(self):
        a = self.a
        a("s_cmp_ge_u32 s2, 256")
        a("s_cbranch_scc1 L_end")
        self.stamp()
        a("s_load_dwordx4 s[96:99], s[0:1], 0")
        a("s_load_dwordx2 s[94:95], s[0:1], 16")
        a("s_load_dwordx4 s[88:91], s[0:1], 32")
        a("s_load_dwordx4 s[84:87], s[0:1], 48")
        a("s_load_dwordx4 s[80:83], s[0:1], 64")
        a(f"s_and_b32 s{sC}, s2, 7")
        a(f"s_lshr_b32 s{sI}, s2, 3")
        a(f"v_lshrrev_b32 v10, 6, v0")
        a(f"v_and_b32 v{vL}, 63, v0")
        a(f"v_readfirstlane_b32 s{sW}, v10")
        a(f"s_getreg_b32 s{sXCC}, hwreg(HW_REG_XCC_ID, 0, 4)")
        a(f"v_and_b32 v{vM}, 31, v{vL}")
        a(f"v_lshlrev_b32 v{vL16}, 4, v{vL}")
        a(f"s_and_b32 s{sT0}, s{sI}, 1")
        a(f"s_lshl_b32 s{sT0}, s{sT0}, 7")
        a(f"s_lshl_b32 s{sR0}, s{sC}, 8")
        a(f"s_add_u32 s{sR0}, s{sR0}, s{sT0}")
        a(f"s_lshr_b32 s{sHP}, s{sI}, 1")
        a(f"s_and_b32 s{sT0}, s{sI}, 3")
        a(f"s_lshl_b32 s{sT0}, s{sT0}, 1")
        a(f"s_lshl_b32 s{sMB0}, s{sC}, 3")
        a(f"s_add_u32 s{sMB0}, s{sMB0}, s{sT0}")
        a(f"s_lshr_b32 s{sCB}, s{sI}, 2")
        a(f"s_mov_b32 s{sHM}, 0x0000ffff")
        a(f"s_mov_b32 s{sHM+1}, 0x0000ffff")
        a(f"s_mov_b32 s{sM2}, 0x33333333")
        a(f"s_bitcmp1_b32 s{sI}, 0")
        a(f"s_cselect_b32 s{sM2}, 0xCCCCCCCC, s{sM2}")
        a(f"s_mov_b32 s{sM2+1}, 0")
        a(f"s_mov_b32 s{sM3}, 0x55555555")
        a(f"s_bitcmp1_b32 s{sI}, 1")
        a(f"s_cselect_b32 s{sM3}, 0xAAAAAAAA, s{sM3}")
        a(f"s_mov_b32 s{sM3+1}, 0")
        a(f"s_lshl_b32 s{sLX}, s{sW}, 12")
        a(f"s_add_u32 s{sLX}, s{sLX}, 2048")
        a(f"s_lshl_b32 s{sLH}, s{sW}, 9")
        a(f"s_mul_i32 s{sLW}, s{sW}, 3072")
        a(f"s_add_u32 s{sLW}, s{sLW}, {P1_WOFF}")
        a(f"s_lshl_b32 s{sL24}, s{sW}, 10")
        a(f"s_lshl_b32 s{sW2B}, s{sW}, 17")
        a(f"s_mul_i32 s{sW4B}, s{sW}, {448*1024}")
        a(f"s_lshr_b32 s{sT0}, s{sW}, 1")
        a(f"s_mul_i32 s{sL3}, s{sT0}, {UPOFF}")
        a(f"s_and_b32 s{sT1}, s{sW}, 1")
        a(f"s_mul_i32 s{sT1}, s{sT1}, {32*224}")
        a(f"s_add_u32 s{sL3}, s{sL3}, s{sT1}")
        a("s_waitcnt lgkmcnt(0)")
        def mk(b, lo, hi, size):
            a(f"s_mov_b32 s{b}, s{lo}")
            a(f"s_and_b32 s{b+1}, s{hi}, 0xffff")
            a(f"s_mov_b32 s{b+2}, {size}")
            a(f"s_mov_b32 s{b+3}, 0x00020000")
        mk(sX, 96, 97, 2048*1024)
        mk(sWQ, 98, 99, 512*3072)
        mk(sWO, 94, 95, 512*1024)
        a(f"s_cmp_ge_u32 s{sW}, 2")
        a(f"s_cselect_b32 s{sWGU}, s90, s88")
        a(f"s_cselect_b32 s{sWGU+1}, s91, s89")
        a(f"s_and_b32 s{sWGU+1}, s{sWGU+1}, 0xffff")
        a(f"s_mov_b32 s{sWGU+2}, {512*3584}")
        a(f"s_mov_b32 s{sWGU+3}, 0x00020000")
        mk(sWD, 84, 85, 1792*1024)
        mk(sOUT, 86, 87, 2048*1024)
        mk(sWS, 82, 83, WS_SIZE)
        mk(sDBG, 80, 81, 256)

    def p1_addr(self):
        a = self.a
        T = 220
        a(f"s_lshl_b32 s{sT0}, s{sC}, 9")
        a(f"s_add_u32 s{sT0}, s{sT0}, {FLAG_OFF}")
        a(f"v_lshlrev_b32 v{vFLAG}, 4, v{vM}")
        a(f"v_add_u32 v{vFLAG}, s{sT0}, v{vFLAG}")
        a.vmem(f"buffer_load_dwordx4 v[{vSNAP}:{vSNAP+3}], v{vFLAG}, {srd(sWS)}, 0 offen sc1", 'snap')
        a(f"v_lshrrev_b32 v{T}, 3, v{vL}")
        a(f"v_lshrrev_b32 v{T+1}, 4, v{vL}")
        a(f"v_and_b32 v{T+2}, 7, v{vL}")
        a(f"s_lshl_b32 s{sT0}, s{sW}, 5")
        a(f"s_add_u32 s{sT0}, s{sT0}, s{sR0}")
        a(f"v_add_u32 v{T+3}, s{sT0}, v{T}")
        a(f"v_lshlrev_b32 v{T+3}, 10, v{T+3}")
        a(f"v_xor_b32 v{T+4}, v{T+2}, v{T+1}")
        a(f"v_xor_b32 v{T+5}, 4, v{T+4}")
        a(f"v_lshl_add_u32 v{T+4}, v{T+4}, 4, v{T+3}")
        a(f"v_lshl_add_u32 v{T+5}, v{T+5}, 4, v{T+3}")
        for j in range(4):
            src = T+4 if j % 2 == 0 else T+5
            a(f"v_add_u32 v{176+j}, {j*(8192-1024)}, v{src}")
        a(f"s_lshl_b32 s{sT0}, s{sW}, 2")
        a(f"v_add_u32 v{T+3}, s{sT0}, v{T}")
        a(f"v_lshrrev_b32 v{T+4}, 1, v{T+3}")
        a(f"v_and_b32 v{T+4}, 7, v{T+4}")
        a(f"v_xor_b32 v{T+4}, v{T+2}, v{T+4}")
        a(f"s_sub_u32 s{sT1}, s{sR0}, 16")
        a(f"v_add_u32 v{T+3}, s{sT1}, v{T+3}")
        a(f"v_max_i32 v{T+3}, 0, v{T+3}")
        a(f"v_lshlrev_b32 v{T+3}, 10, v{T+3}")
        a(f"v_lshl_add_u32 v180, v{T+4}, 4, v{T+3}")
        a(f"s_mul_i32 s{sT0}, s{sW}, {16*3072}")
        a(f"s_lshl_b32 s{sT1}, s{sHP}, 6")
        a(f"s_add_u32 s{sT0}, s{sT0}, s{sT1}")
        for u in range(3):
            a(f"v_add_u32 v{T+3}, {64*u}, v{vL}")
            a(f"v_mul_u32_u24 v{T+4}, 43691, v{T+3}")
            a(f"v_lshrrev_b32 v{T+4}, 19, v{T+4}")
            a(f"v_mul_u32_u24 v{T+5}, 12, v{T+4}")
            a(f"v_sub_u32 v{T+5}, v{T+3}, v{T+5}")
            a(f"v_mul_u32_u24 v{T+4}, 3072, v{T+4}")
            a(f"v_lshrrev_b32 v{T+6}, 2, v{T+5}")
            a(f"v_lshl_add_u32 v{T+4}, v{T+6}, 10, v{T+4}")
            a(f"v_and_b32 v{T+5}, 3, v{T+5}")
            a(f"v_lshl_add_u32 v{T+4}, v{T+5}, 4, v{T+4}")
            a(f"v_add_u32 v{T+4}, s{sT0}, v{T+4}")
            if u: a(f"v_subrev_u32 v{181+u}, {1024*u}, v{T+4}")
            else: a(f"v_mov_b32 v{181+u}, v{T+4}")

    def p1_dma_groups(self, c):
        st = (c % 4) * P1_STAGE
        tag = ('p1', c)
        a = self.a
        def g0():
            a(f"s_add_u32 m0, s{sLX}, {st}")
            a(f"s_mov_b32 s{sA}, {c*128}")
            a.vmem(f"buffer_load_dwordx4 v176, {srd(sX)}, s{sA} offen lds", tag)
            a.vmem(f"buffer_load_dwordx4 v177, {srd(sX)}, s{sA} offen offset:1024 lds", tag)
        def g1():
            a.vmem(f"buffer_load_dwordx4 v178, {srd(sX)}, s{sA} offen offset:2048 lds", tag)
            a.vmem(f"buffer_load_dwordx4 v179, {srd(sX)}, s{sA} offen offset:3072 lds", tag)
        def g2():
            a(f"s_add_u32 m0, s{sLH}, {st}")
            a(f"s_mov_b32 s{sB}, {c*64*3072}")
            a.vmem(f"buffer_load_dwordx4 v180, {srd(sX)}, s{sA} offen lds", tag)
            a(f"s_add_u32 m0, s{sLW}, {st}")
            a("s_nop 0")
            a.vmem(f"buffer_load_dwordx4 v181, {srd(sWQ)}, s{sB} offen lds", tag)
        def g3():
            a.vmem(f"buffer_load_dwordx4 v182, {srd(sWQ)}, s{sB} offen offset:1024 lds", tag)
            a.vmem(f"buffer_load_dwordx4 v183, {srd(sWQ)}, s{sB} offen offset:2048 lds", tag)
        return [g0, g1, g2, g3]

    def w24_dma(self, which, u, ldsaddr):
        a = self.a
        S = sWO if which == 2 else sWD
        B = sW2B if which == 2 else sW4B
        def g():
            a(f"s_add_u32 m0, s{sL24}, {ldsaddr}")
            a(f"s_add_u32 s{sA}, s{B}, {u*8192}")
            a.vmem(f"buffer_load_dwordx4 v{vW24D}, {srd(S)}, s{sA} offen lds", ('w%d' % which, u))
        return g

    def w3_dma_groups(self, c):
        a = self.a
        st = SLOT[c % 5]
        tag = ('w3', c)
        def g0():
            a(f"s_add_u32 m0, s{sL3}, {st}")
            a(f"s_mov_b32 s{sB}, {c*64*3584}")
            for u in range(0, 4):
                a.vmem(f"buffer_load_dwordx4 v{vW3D+u}, {srd(sWGU)}, s{sB} offen offset:{1024*u} lds" if u else
                       f"buffer_load_dwordx4 v{vW3D}, {srd(sWGU)}, s{sB} offen lds", tag)
        def g1():
            a(f"s_add_u32 m0, s{sL3}, {st+4096}")
            a(f"s_mov_b32 s{sB}, {c*64*3584}")
            for u in range(4, 7):
                o = 1024*(u-4)
                a.vmem(f"buffer_load_dwordx4 v{vW3D+u}, {srd(sWGU)}, s{sB} offen offset:{o} lds" if o else
                       f"buffer_load_dwordx4 v{vW3D+u}, {srd(sWGU)}, s{sB} offen lds", tag)
        return [g0, g1]

    def later_addr(self):
        a = self.a
        T = 220
        a(f"s_and_b32 s{sT0}, s{sW}, 1")
        a(f"s_mul_i32 s{sT0}, s{sT0}, {32*3584}")
        a(f"s_mul_i32 s{sT1}, s{sHP}, 224")
        a(f"s_add_u32 s{sT0}, s{sT0}, s{sT1}")
        for u in range(7):
            a(f"v_add_u32 v{T+3}, {64*u}, v{vL}")
            a(f"v_mul_u32_u24 v{T+4}, 4682, v{T+3}")
            a(f"v_lshrrev_b32 v{T+4}, 16, v{T+4}")
            a(f"v_mul_u32_u24 v{T+5}, 14, v{T+4}")
            a(f"v_sub_u32 v{T+5}, v{T+3}, v{T+5}")
            a(f"v_mul_u32_u24 v{T+4}, 3584, v{T+4}")
            a(f"v_lshl_add_u32 v{T+4}, v{T+5}, 4, v{T+4}")
            a(f"v_add_u32 v{T+4}, s{sT0}, v{T+4}")
            if u & 3: a(f"v_subrev_u32 v{vW3D+u}, {1024*(u&3)}, v{T+4}")
            else: a(f"v_mov_b32 v{vW3D+u}, v{T+4}")
        a(f"v_lshrrev_b32 v{T}, 3, v{vL}")
        a(f"v_and_b32 v{T+1}, 7, v{vL}")
        a(f"v_bfe_u32 v{T+2}, v{vL}, 4, 1")
        a(f"v_lshlrev_b32 v{T+2}, 2, v{T+2}")
        a(f"v_xor_b32 v{T+1}, v{T+1}, v{T+2}")
        a(f"v_lshlrev_b32 v{T}, 10, v{T}")
        a(f"v_lshl_add_u32 v{T}, v{T+1}, 4, v{T}")
        a(f"s_lshl_b32 s{sT0}, s{sCB}, 7")
        a(f"v_add_u32 v{vW24D}, s{sT0}, v{T}")
        a(f"s_lshr_b32 s{sT0}, s{sW}, 1")
        a(f"s_add_u32 s{sT0}, s{sT0}, s{sMB0}")
        a(f"s_lshl_b32 s{sT0}, s{sT0}, 15")
        a(f"s_and_b32 s{sT1}, s{sW}, 1")
        a(f"s_lshl_b32 s{sT1}, s{sT1}, 6")
        a(f"s_add_u32 s{sT0}, s{sT0}, s{sT1}")
        a(f"s_lshl_b32 s{sT1}, s{sCB}, 7")
        a(f"s_add_u32 s{sT0}, s{sT0}, s{sT1}")
        a(f"v_lshlrev_b32 v{T}, 10, v{vM}")
        a(f"v_lshrrev_b32 v{T+1}, 5, v{vL}")
        a(f"v_lshl_add_u32 v{T}, v{T+1}, 3, v{T}")
        for jj in range(4):
            o = f" offset:{16*jj}" if jj else ""
            a.vmem(f"buffer_load_dwordx2 v[{vRES+2*jj}:{vRES+2*jj+1}], v{T}, {srd(sX)}, s{sT0} offen{o}", 'xres')
        a(f"s_lshl_b32 s{sT0}, s{sI}, 4")
        a(f"s_lshl_b32 s{sT1}, s{sW}, 2")
        a(f"s_add_u32 s{sT0}, s{sT0}, s{sT1}")
        a(f"s_lshl_b32 s{sT0}, s{sT0}, 10")
        for r in range(4):
            o = f" offset:{1024*r}" if r else ""
            a.vmem(f"buffer_load_dwordx4 v[{16+4*r}:{19+4*r}], v{vL16}, {srd(sWO)}, s{sT0} offen{o}", 'wor')

    def p1_lds_addr(self):
        a = self.a
        T = 220
        a(f"v_lshrrev_b32 v{T}, 5, v{vL}")
        a(f"v_lshrrev_b32 v{T+1}, 1, v{vM}")
        a(f"v_and_b32 v{T+1}, 7, v{T+1}")
        a(f"v_xor_b32 v{T+1}, v{T+1}, v{T}")
        a(f"v_lshlrev_b32 v{T+2}, 7, v{vM}")
        a(f"v_add_u32 v{T+2}, s{sLX}, v{T+2}")
        for t in range(4):
            a(f"v_xor_b32 v{T+3}, {2*t}, v{T+1}")
            a(f"v_lshl_add_u32 v{184+2*t}, v{T+3}, 4, v{T+2}")
            a(f"v_add_u32 v{185+2*t}, 0x10000, v{184+2*t}")
        a(f"v_and_b32 v{T+4}, 15, v{vL}")
        a(f"v_lshrrev_b32 v{T+1}, 1, v{T+4}")
        a(f"v_xor_b32 v{T+1}, v{T+1}, v{T}")
        a(f"v_lshlrev_b32 v{T+2}, 7, v{T+4}")
        for t in range(4):
            a(f"v_xor_b32 v{T+3}, {2*t}, v{T+1}")
            a(f"v_lshl_add_u32 v{192+2*t}, v{T+3}, 4, v{T+2}")
            a(f"v_add_u32 v{193+2*t}, 0x10000, v{192+2*t}")
        a(f"s_lshl_b32 s{sT0}, s{sW}, 1")
        a(f"v_xor_b32 v{T+3}, s{sT0}, v{T+1}")
        a(f"v_lshl_add_u32 v200, v{T+3}, 4, v{T+2}")
        a(f"v_add_u32 v201, 0x10000, v200")
        a(f"v_lshrrev_b32 v{T+1}, 2, v{T+4}")
        a(f"v_lshl_add_u32 v{T+1}, v{T}, 3, v{T+1}")
        a(f"v_mul_u32_u24 v{T+1}, 192, v{T+1}")
        a(f"v_bfe_u32 v{T+2}, v{vL}, 4, 1")
        a(f"v_lshl_add_u32 v{T+1}, v{T+2}, 5, v{T+1}")
        a(f"v_and_b32 v{T+2}, 3, v{vL}")
        a(f"v_lshl_add_u32 v202, v{T+2}, 3, v{T+1}")
        a(f"v_add_u32 v203, 0x10000, v202")
        a(f"s_min_u32 s{sT0}, s{sW}, 2")
        a(f"s_lshl_b32 s{sT0}, s{sT0}, 6")
        a(f"v_add_u32 v204, s{sT0}, v202")
        a(f"v_add_u32 v205, 0x10000, v204")
        for r in (206, 207, 208, 209): a(f"v_mov_b32 v{r}, 0")
        a("v_mov_b32 v210, 0x3f803f80")
        for r in range(128, 136): a(f"v_mov_b32 v{r}, 0x3f803f80")

    @staticmethod
    def win(base2, off):
        w = off >> 16
        assert w in (0, 1), off
        return base2 + w, off & 0xffff

    def p1_reads(self, s):
        a = self.a
        c, t = divmod(s, 4)
        st = (c % 4) * P1_STAGE
        xb = 96 + 4*((c & 1)*4 + t)
        hb = 128 + 4*(s & 1)
        wb = 144 + 16*(s & 1)
        def rdX():
            r, o = self.win(184 + 2*t, st)
            a.ds(f"ds_read_b128 v[{xb}:{xb+3}], v{r} offset:{o}", ('X', s))
        def rdW(blk, h):
            def f():
                r, o = self.win(202, st + P1_WOFF + (16*t + 4*h)*192 + 64*blk)
                d = wb + 4*blk + 2*h
                a.ds(f"ds_read_b64_tr_b16 v[{d}:{d+1}], v{r} offset:{o}", ('W%d' % blk, s))
            return f
        def rdWh(h):
            def f():
                r, o = self.win(204, st + P1_WOFF + (16*t + 4*h)*192)
                d = wb + 12 + 2*h
                a.ds(f"ds_read_b64_tr_b16 v[{d}:{d+1}], v{r} offset:{o}", ('Wh', s))
            return f
        def rdH():
            r, o = self.win(192 + 2*t, st)
            a(f"s_mov_b64 exec, s[{sHM}:{sHM+1}]")
            a.ds(f"ds_read_b128 v[{hb}:{hb+3}], v{r} offset:{o}", ('H', s))
            a("s_mov_b64 exec, -1")
        def rdHs():
            r, o = self.win(200, st)
            d = 136 + 4*(c & 1)
            a.ds(f"ds_read_b128 v[{d}:{d+3}], v{r} offset:{o}", ('Hs', c))
        g = [[rdX, rdW(0, 0), rdW(0, 1)], [rdW(1, 0), rdW(1, 1), rdH], [rdW(2, 0), rdW(2, 1)], [rdWh(0), rdWh(1)]]
        if t == 0: g[3].append(rdHs)
        return g

    def p1_main(self):
        a = self.a
        self.p1_addr()
        for c in range(4):
            for g in self.p1_dma_groups(c): g()
        self.later_addr()
        self.p1_lds_addr()
        if self.fine == 1: self.stamp()
        a.wait_vm(('p1', 0))
        a("s_barrier")
        if self.fine == 1: self.stamp()
        a(f"s_lshl_b32 s{sT0}, s{sC}, 5")
        a(f"s_add_u32 s{sT0}, s{sT0}, s{sI}")
        a(f"s_cmp_eq_u32 s{sW}, 0")
        a(f"s_cselect_b32 s{sT0}, s{sT0}, 0x10000")
        a(f"s_or_b32 s{sT1}, s{sXCC}, 0x40")
        a(f"v_mov_b32 v220, s{sT0}")
        a(f"v_mov_b32 v221, s{sT1}")
        a("s_mov_b64 exec, 1")
        a.vmem(f"buffer_store_byte v221, v220, {srd(sDBG)}, 0 offen", 'reg')
        a("s_mov_b64 exec, -1")
        for g in self.p1_reads(0):
            for f in g: f()
        dq = []
        for s in range(32):
            c, t = divmod(s, 4)
            xb = 96 + 4*((c & 1)*4 + t)
            hb = 128 + 4*(s & 1)
            wb = 144 + 16*(s & 1)
            if t == 3:
                a.wait_lg(('Wh', s))
                if c < 7: a.wait_vm(('p1', c+1))
                a("s_barrier")
                if self.fine == 1: self.stamp()
                if c + 4 < 8: dq += self.p1_dma_groups(c + 4)
                elif c == 4: dq += [self.w24_dma(2, u, 4096*u) for u in range(0, 7)]
                elif c == 5: dq += [self.w24_dma(2, u, 4096*u) for u in range(7, 15)]
                elif c == 6: dq += [self.w24_dma(2, 15, 4096*15)]
                elif c == 7: dq += self.w3_dma_groups(0) + self.w3_dma_groups(1)
            nxt = self.p1_reads(s+1) if s < 31 else [[], [], [], []]
            C = (lambda r: "0") if s == 0 else (lambda r: f"v[{r}:{r+15}]")
            a.wait_lg(('W0', s))
            a(f"v_mfma_f32_32x32x16_bf16 v[32:47], v[{wb}:{wb+3}], v[{xb}:{xb+3}], {C(32)}")
            for f in nxt[0]: f()
            a.wait_lg(('W1', s))
            a(f"v_mfma_f32_32x32x16_bf16 v[48:63], v[{wb+4}:{wb+7}], v[{xb}:{xb+3}], {C(48)}")
            for f in nxt[1]: f()
            if dq and 'nodma' not in EXP: dq.pop(0)()
            a.wait_lg(('W2', s))
            a(f"v_mfma_f32_32x32x16_bf16 v[64:79], v[{wb+8}:{wb+11}], v[{xb}:{xb+3}], {C(64)}")
            for f in nxt[2]: f()
            a.wait_lg(('Wh', s))
            a(f"v_mfma_f32_32x32x16_bf16 v[80:95], v[{wb+12}:{wb+15}], v[{hb}:{hb+3}], {C(80)}")
            for f in nxt[3]: f()
            if c >= 4 and dq and 'nodma' not in EXP: dq.pop(0)()
            if t == 3 and 'nodot' not in EXP:
                a.wait_lg(('Hs', c))
                for tt in range(4):
                    b = 96 + 4*((c & 1)*4 + tt)
                    for k in range(4):
                        a(f"v_dot2c_f32_bf16 v206, v{b+k}, v210")
                        a(f"v_dot2c_f32_bf16 v207, v{b+k}, v{b+k}")
                d = 136 + 4*(c & 1)
                for k in range(4):
                    a(f"v_dot2c_f32_bf16 v208, v{d+k}, v210")
                    a(f"v_dot2c_f32_bf16 v209, v{d+k}, v{d+k}")
        while dq and 'nodma' not in EXP: dq.pop(0)()

    def row_stats(self, vs, vq, vmean, vrstd, t0):
        a = self.a
        a(f"v_mul_f32 v{vmean}, {hex(f2u(1/512))}, v{vs}")
        a(f"v_mul_f32 v{t0}, {hex(f2u(1/512))}, v{vq}")
        a(f"v_fma_f32 v{t0}, -v{vmean}, v{vmean}, v{t0}")
        a(f"v_max_f32 v{t0}, 0, v{t0}")
        a(f"v_add_f32 v{t0}, {hex(f2u(1e-5))}, v{t0}")
        a(f"v_rsq_f32 v{vrstd}, v{t0}")

    def half_total(self, vs, vq, t):
        a = self.a
        a(f"v_permlane32_swap_b32 v{vs}, v{vq}")
        a(f"v_add_f32 v{vs}, v{vs}, v{vq}")
        a(f"v_mov_b32 v{t}, v{vs}")
        a(f"v_permlane32_swap_b32 v{vs}, v{t}")
        return vs, t

    def p1_epilogue(self):
        a = self.a
        MEAN, RSTD = 224, 226
        vs, vq = self.half_total(206, 207, 220)
        self.row_stats(vs, vq, 228, RSTD, 221)
        a(f"v_sub_f32 v{MEAN}, 0, v228")
        hs, hq = self.half_total(208, 209, 230)
        a(f"v_mov_b32 v209, v230")
        a(f"v_and_b32 v231, 15, v{vL}")
        a(f"v_lshlrev_b32 v231, 3, v231")
        a(f"s_lshl_b32 s{sT0}, s{sW}, 7")
        a(f"s_add_u32 s{sT0}, s{sT0}, {HS}")
        a(f"v_add_u32 v232, s{sT0}, v231")
        a("s_mov_b32 exec_lo, 0xffff")
        a("s_mov_b32 exec_hi, 0")
        a.ds(f"ds_write_b64 v232, v[208:209]", 'e')
        a("s_mov_b64 exec, -1")
        a(f"v_lshrrev_b32 v233, 5, v{vL}")
        a(f"v_lshlrev_b32 v234, 6, v233")
        a(f"s_lshl_b32 s{sT0}, s{sW}, 7")
        a(f"s_add_u32 s{sT0}, s{sT0}, {CS}")
        a(f"v_add_u32 v235, s{sT0}, v234")
        a(f"s_mov_b32 s{sEX}, 0x10000")
        a(f"s_mov_b32 s{sEX+1}, 0x10000")
        a(f"s_mov_b64 exec, s[{sEX}:{sEX+1}]")
        for jj in range(4):
            a.ds(f"ds_write_b128 v235, v[{80+4*jj}:{83+4*jj}] offset:{16*jj}", 'e')
        a("s_mov_b64 exec, -1")
        a.wait_lg_all()
        a("s_barrier")
        a(f"v_add_u32 v236, {CS}, v234")
        for blk in range(3):
            for jj in range(4):
                d = 96 + 16*blk + 4*jj
                a.ds(f"ds_read_b128 v[{d}:{d+3}], v236 offset:{128*blk+16*jj}", ('cs', blk))
        a(f"s_min_u32 s{sT0}, s{sW}, 2")
        a(f"s_lshl_b32 s{sT0}, s{sT0}, 7")
        a(f"v_add_u32 v237, s{sT0}, v236")
        for jj in range(4):
            d = 144 + 4*jj
            a.ds(f"ds_read_b128 v[{d}:{d+3}], v237 offset:{16*jj}", 'csh')
        a(f"v_add_u32 v238, {HS}, v231")
        for w in range(4):
            a.ds(f"ds_read_b64 v[{160+2*w}:{161+2*w}], v238 offset:{128*w}", 'hs')
        a(f"s_lshl_b32 s{sT0}, s{sW}, 5")
        a(f"s_add_u32 s{sT0}, s{sT0}, 16")
        a(f"v_add_u32 v240, s{sT0}, v{vM}")
        a(f"v_mul_u32_u24 v240, {KVS}, v240")
        a(f"v_add_u32 v240, {KV}, v240")
        a(f"v_lshl_add_u32 v241, v233, 4, v240")
        a(f"v_lshl_add_u32 v242, v233, 5, v240")
        def scale(base, csb, neg, rs):
            for p in range(8):
                a(f"v_pk_fma_f32 v[{base+2*p}:{base+2*p+1}], v[{csb+2*p}:{csb+2*p+1}], v[{neg}:{neg+1}], v[{base+2*p}:{base+2*p+1}] op_sel_hi:[1,0,1]")
            for p in range(8):
                a(f"v_pk_mul_f32 v[{base+2*p}:{base+2*p+1}], v[{base+2*p}:{base+2*p+1}], v[{rs}:{rs+1}] op_sel_hi:[1,0]")
        a.wait_lg(('cs', 1))
        scale(48, 112, MEAN, RSTD)
        for p in range(8):
            a(f"v_cvt_pk_bf16_f32 v{168+p}, v{48+2*p}, v{49+2*p}")
        a.ds(f"ds_write_b128 v241, v[168:171]", 'kv')
        a.ds(f"ds_write_b128 v241, v[172:175] offset:32", 'kv')
        a.wait_lg(('cs', 2))
        scale(64, 128, MEAN, RSTD)
        for hd in range(2):
            for q in range(2):
                b = 64 + 8*hd + 4*q
                a.ds(f"ds_write_b128 v242, v[{b}:{b+3}] offset:{64+64*hd+16*q}", 'kv')
        scale(32, 96, MEAN, RSTD)
        for p in range(8):
            a(f"v_cvt_pk_bf16_f32 v{176+p}, v{32+2*p}, v{33+2*p}")
        a.wait_lg('hs')
        a("v_pk_add_f32 v[160:161], v[160:161], v[162:163]")
        a("v_pk_add_f32 v[164:165], v[164:165], v[166:167]")
        a("v_pk_add_f32 v[160:161], v[160:161], v[164:165]")
        self.row_stats(160, 161, 162, 246, 163)
        a("v_sub_f32 v244, 0, v162")
        scale(80, 144, 244, 246)
        a(f"v_and_b32 v239, 15, v{vL}")
        a(f"v_mul_u32_u24 v239, {KVS}, v239")
        a(f"v_add_u32 v239, {KV}, v239")
        Lk, Lv, Ld = a.newlabel(), a.newlabel(), a.newlabel()
        a(f"s_cmp_eq_u32 s{sW}, 1")
        a(f"s_cbranch_scc1 {Lk}")
        a(f"s_cmp_eq_u32 s{sW}, 2")
        a(f"s_cbranch_scc0 {Ld}")
        a(f"v_lshl_add_u32 v239, v233, 5, v239")
        a(f"s_mov_b64 exec, s[{sHM}:{sHM+1}]")
        for hd in range(2):
            for q in range(2):
                b = 80 + 8*hd + 4*q
                a(f"ds_write_b128 v239, v[{b}:{b+3}] offset:{64+64*hd+16*q}")
        a("s_mov_b64 exec, -1")
        a(f"s_branch {Ld}")
        a.label(Lk)
        for p in range(8):
            a(f"v_cvt_pk_bf16_f32 v{168+p}, v{80+2*p}, v{81+2*p}")
        a(f"v_lshl_add_u32 v239, v233, 4, v239")
        a(f"s_mov_b64 exec, s[{sHM}:{sHM+1}]")
        a(f"ds_write_b128 v239, v[168:171]")
        a(f"ds_write_b128 v239, v[172:175] offset:32")
        a("s_mov_b64 exec, -1")
        a.label(Ld)
        a.wait_lg_all()
        a("s_barrier")
        a(f"v_subrev_u32 v241, {14*KVS}, v241")
        a(f"v_lshl_add_u32 v242, v233, 6, v240")
        a(f"v_subrev_u32 v242, {14*KVS-64}, v242")
        for j in range(8):
            for hd in range(2):
                d = 96 + 8*j + 4*hd
                a.ds(f"ds_read_b128 v[{d}:{d+3}], v241 offset:{(14-2*j)*KVS + 32*hd}", ('K', j, hd))
        for j in range(8):
            for hd in range(2):
                a.wait_lg(('K', j, hd))
                d = 96 + 8*j + 4*hd
                L = 32 + 8*hd + j
                q = 176 + 4*hd
                a(f"v_dot2_f32_bf16 v{L}, v{q}, v{d}, 0")
                for k in range(1, 4):
                    a(f"v_dot2c_f32_bf16 v{L}, v{q+k}, v{d+k}")
        def rdV(j):
            for q in range(4):
                d = 96 + 16*(j & 3) + 4*q
                a.ds(f"ds_read_b128 v[{d}:{d+3}], v242 offset:{(14-2*j)*KVS + 16*q}", ('V', j))
        for j in range(8):
            a(f"v_permlane32_swap_b32 v{32+j}, v{40+j}")
        for j in range(3): rdV(j)
        for j in range(8):
            a(f"v_add_f32 v{32+j}, v{32+j}, v{40+j}")
        Lm = a.newlabel()
        a(f"s_lshl_b32 s{sT0}, s{sW}, 5")
        a(f"s_add_u32 s{sT0}, s{sT0}, s{sR0}")
        a(f"s_cmp_lg_u32 s{sT0}, 0")
        a(f"s_cbranch_scc1 {Lm}")
        a(f"v_mov_b32 v48, {hex(f2u(-1e30))}")
        for j in range(1, 8):
            a(f"v_cmp_gt_u32 vcc, {2*j}, v{vM}")
            a(f"v_cndmask_b32 v{32+j}, v{32+j}, v48, vcc")
        a.label(Lm)
        a("v_max3_f32 v48, v32, v33, v34")
        a("v_max3_f32 v48, v48, v35, v36")
        a("v_max3_f32 v48, v48, v37, v38")
        a("v_max_f32 v48, v48, v39")
        cc = 0.25*LOG2E
        a(f"s_mov_b32 s{sT0}, {hex(f2u(cc))}")
        a(f"v_mul_f32 v49, s{sT0}, v48")
        for j in range(8):
            a(f"v_fma_f32 v{32+j}, v{32+j}, s{sT0}, -v49")
        for j in range(8):
            a(f"v_exp_f32 v{32+j}, v{32+j}")
        a("v_pk_add_f32 v[40:41], v[32:33], v[34:35]")
        a("v_pk_add_f32 v[42:43], v[36:37], v[38:39]")
        a("v_pk_add_f32 v[40:41], v[40:41], v[42:43]")
        a("v_add_f32 v40, v40, v41")
        a("v_rcp_f32 v50, v40")
        for j in range(8):
            if j + 3 < 8: rdV(j + 3)
            a.wait_lg(('V', j))
            b = 96 + 16*(j & 3)
            pr = 32 + (j & ~1)
            sel = "op_sel:[0,1,0] op_sel_hi:[1,1,1]" if (j & 1) else "op_sel_hi:[1,0,1]"
            selm = "op_sel:[0,1] op_sel_hi:[1,1]" if (j & 1) else "op_sel_hi:[1,0]"
            for p in range(8):
                if j == 0:
                    a(f"v_pk_mul_f32 v[{64+2*p}:{65+2*p}], v[{b+2*p}:{b+2*p+1}], v[{pr}:{pr+1}] {selm}")
                else:
                    a(f"v_pk_fma_f32 v[{64+2*p}:{65+2*p}], v[{b+2*p}:{b+2*p+1}], v[{pr}:{pr+1}], v[{64+2*p}:{65+2*p}] {sel}")
        for p in range(8):
            a(f"v_pk_mul_f32 v[{64+2*p}:{65+2*p}], v[{64+2*p}:{65+2*p}], v[50:51] op_sel_hi:[1,0]")
        for p in range(8):
            a(f"v_cvt_pk_bf16_f32 v{80+p}, v{64+2*p}, v{65+2*p}")
        for k in range(4):
            a(f"v_permlane32_swap_b32 v{80+k}, v{84+k}")
        a.wait_vm('wor')
        for r in range(4):
            a(f"v_dot2_f32_bf16 v{52+r}, v{16+4*r}, v210, 0")
            for k in range(1, 4):
                a(f"v_dot2c_f32_bf16 v{52+r}, v{16+4*r+k}, v210")
        a("v_permlane32_swap_b32 v52, v53")
        a("v_permlane32_swap_b32 v54, v55")
        a("v_add_f32 v52, v52, v53")
        a("v_add_f32 v54, v54, v55")
        a("v_permlane16_swap_b32 v52, v54")
        a("v_add_f32 v52, v52, v54")
        for rot in (8, 4, 2, 1):
            a(f"v_add_f32_dpp v52, v52, v52 row_ror:{rot} row_mask:0xf bank_mask:0xf")
        a(f"v_mul_f32 v52, {hex(f2u(1/512))}, v52")
        a("v_cvt_pk_bf16_f32 v53, v52, v52")
        a("v_lshlrev_b32 v54, 16, v53")
        a("v_sub_f32 v54, v52, v54")
        a("v_cvt_pk_bf16_f32 v54, v54, v54")
        a(f"v_lshrrev_b32 v55, 4, v{vL}")
        a("v_lshrrev_b32 v56, 1, v55")
        a("v_and_b32 v55, 1, v55")
        a("v_lshl_or_b32 v55, v55, 1, v56")
        a(f"s_lshr_b32 s{sT0}, s{sW}, 1")
        a(f"s_lshl_b32 s{sT0}, s{sT0}, 3")
        a(f"s_and_b32 s{sT1}, s{sW}, 1")
        a(f"s_lshl_b32 s{sT1}, s{sT1}, 4")
        a(f"s_add_u32 s{sT0}, s{sT0}, s{sT1}")
        a(f"s_lshl_b32 s{sT1}, s{sI}, 5")
        a(f"s_add_u32 s{sT0}, s{sT0}, s{sT1}")
        a(f"s_lshl_b32 s{sT1}, s{sC}, 11")
        a(f"s_add_u32 s{sT0}, s{sT0}, s{sT1}")
        a(f"s_add_u32 s{sT0}, s{sT0}, {WBAR_OFF}")
        a(f"v_lshlrev_b32 v55, 1, v55")
        a(f"v_add_u32 v55, s{sT0}, v55")
        a(f"s_lshl_b32 s{sT0}, s{sW}, 5")
        a(f"s_add_u32 s{sT0}, s{sT0}, s{sR0}")
        a(f"s_lshl_b32 s{sT0}, s{sT0}, 2")
        a(f"s_add_u32 s{sT0}, s{sT0}, {MEAN_OFF}")
        a(f"s_cmp_eq_u32 s{sHP}, 0")
        a(f"s_cselect_b32 s{sT0}, s{sT0}, 0x7f000000")
        a(f"v_lshlrev_b32 v56, 2, v{vM}")
        a(f"v_add_u32 v56, s{sT0}, v56")
        a(f"s_lshr_b32 s{sT0}, s{sR0}, 5")
        a(f"s_add_u32 s{sT0}, s{sT0}, s{sW}")
        a(f"s_lshl_b32 s{sT0}, s{sT0}, 5")
        a(f"s_lshl_b32 s{sT1}, s{sHP}, 1")
        a(f"s_add_u32 s{sT0}, s{sT0}, s{sT1}")
        a(f"s_lshl_b32 s{sT2}, s{sT0}, 10")
        a(f"buffer_store_dwordx4 v[80:83], v{vL16}, {srd(sWS)}, s{sT2} offen")
        a(f"buffer_store_dwordx4 v[84:87], v{vL16}, {srd(sWS)}, s{sT2} offen offset:1024")
        a(f"s_mov_b32 s{sEX}, 0x00010001")
        a(f"s_mov_b32 s{sEX+1}, 0x00010001")
        a(f"s_mov_b64 exec, s[{sEX}:{sEX+1}]")
        a(f"buffer_store_short v53, v55, {srd(sWS)}, 0 offen")
        a(f"buffer_store_short v54, v55, {srd(sWS)}, 0 offen offset:1024")
        a("s_mov_b32 exec_lo, -1")
        a("s_mov_b32 exec_hi, 0")
        a(f"buffer_store_dword v228, v56, {srd(sWS)}, 0 offen")
        a("s_mov_b64 exec, -1")

    def barrier1(self):
        a = self.a
        a.wait_vm_all()
        a("s_barrier")
        Lw, Lslow, Lp, Lp2, Lq, Ldone = (a.newlabel() for _ in range(6))
        a(f"s_cmp_lg_u32 s{sW}, 0")
        a(f"s_cbranch_scc1 {Lw}")
        a(f"s_lshl_b32 s{sT3}, s{sC}, 5")
        a(f"v_and_b32 v222, 7, v{vL}")
        a(f"v_lshlrev_b32 v222, 2, v222")
        a(f"buffer_load_dword v223, v222, {srd(sDBG)}, s{sT3} offen sc1")
        a(f"s_add_u32 s{sT0}, s{sT3}, s{sI}")
        a(f"v_mov_b32 v220, s{sT0}")
        a(f"s_mul_i32 s{sT2}, s{sXCC}, 0x01010101")
        a(f"s_or_b32 s{sT1}, s{sT2}, 0x40404040")
        a("s_waitcnt vmcnt(0)")
        a("v_and_b32 v224, 0x4f4f4f4f, v223")
        a(f"v_cmp_ne_u32 vcc, s{sT1}, v224")
        a("s_and_b32 vcc_lo, vcc_lo, 0xff")
        a(f"s_cbranch_scc1 {Lslow}")
        a(f"s_mov_b32 s{sMODE}, 0")
        a(f"s_or_b32 s{sT0}, s{sXCC}, 0x60")
        a(f"v_mov_b32 v221, s{sT0}")
        a("s_mov_b64 exec, 1")
        a(f"buffer_store_byte v221, v220, {srd(sDBG)}, 0 offen")
        a("s_mov_b64 exec, -1")
        a.label(Lp)
        a(f"buffer_load_dword v223, v222, {srd(sDBG)}, s{sT3} offen sc1")
        a("s_waitcnt vmcnt(0)")
        a("v_and_b32 v224, 0x20202020, v223")
        a("v_cmp_ne_u32 vcc, 0x20202020, v224")
        a("s_and_b32 vcc_lo, vcc_lo, 0xff")
        a(f"s_cbranch_scc1 {Lp}")
        a(f"s_branch {Ldone}")
        a.label(Lslow)
        a("buffer_wbl2 sc1")
        a("s_waitcnt vmcnt(0)")
        a(f"s_or_b32 s{sT0}, s{sXCC}, 0xe0")
        a(f"v_mov_b32 v221, s{sT0}")
        a("s_mov_b64 exec, 1")
        a(f"buffer_store_byte v221, v220, {srd(sDBG)}, 0 offen sc1")
        a("s_mov_b64 exec, -1")
        a.label(Lp2)
        a(f"buffer_load_dword v223, v222, {srd(sDBG)}, s{sT3} offen sc1")
        a("s_waitcnt vmcnt(0)")
        a(f"v_xor_b32 v224, s{sT2}, v223")
        a("v_and_b32 v224, 0x0f0f0f0f, v224")
        a("v_add_u32 v224, 0x0f0f0f0f, v224")
        a("v_and_b32 v224, 0x10101010, v224")
        a("v_xor_b32 v225, 0x10101010, v224")
        a("v_lshrrev_b32 v226, 1, v223")
        a("v_and_b32 v225, v225, v226")
        a("v_lshrrev_b32 v226, 3, v223")
        a("v_or_b32 v225, v225, v226")
        a("v_and_b32 v225, 0x10101010, v225")
        a("v_cmp_ne_u32 vcc, 0x10101010, v225")
        a("s_and_b32 vcc_lo, vcc_lo, 0xff")
        a(f"s_cbranch_scc1 {Lp2}")
        a("v_cmp_ne_u32 vcc, 0, v224")
        a("s_and_b32 vcc_lo, vcc_lo, 0xff")
        a(f"s_cselect_b32 s{sMODE}, 1, 0")
        a("buffer_inv sc1")
        a("s_waitcnt vmcnt(0)")
        a.label(Ldone)
        a.label(Lw)
        a("s_barrier")

    def cbarrier(self, bar, mask):
        a = self.a
        a.wait_vm_all()
        a("s_barrier")
        Lw, Lp, Ls, Lf, Le = (a.newlabel() for _ in range(5))
        a(f"s_cmp_lg_u32 s{sW}, 0")
        a(f"s_cbranch_scc1 {Lw}")
        a(f"v_add_u32 v{vSNAP+bar}, 1, v{vSNAP+bar}")
        a(f"s_lshl_b64 s[{sEX}:{sEX+1}], 1, s{sI}")
        a(f"s_cmp_lg_u32 s{sMODE}, 0")
        a(f"s_cbranch_scc1 {Ls}")
        a(f"s_mov_b64 exec, s[{sEX}:{sEX+1}]")
        a(f"buffer_store_dword v{vSNAP+bar}, v{vFLAG}, {srd(sWS)}, 0 offen offset:{4*bar}")
        a(f"s_branch {Lf}")
        a.label(Ls)
        a("buffer_wbl2 sc1")
        a("s_waitcnt vmcnt(0)")
        a(f"s_mov_b64 exec, s[{sEX}:{sEX+1}]")
        a(f"buffer_store_dword v{vSNAP+bar}, v{vFLAG}, {srd(sWS)}, 0 offen offset:{4*bar} sc1")
        a.label(Lf)
        a("s_mov_b64 exec, -1")
        a.label(Lp)
        a(f"buffer_load_dword v220, v{vFLAG}, {srd(sWS)}, 0 offen offset:{4*bar} sc1")
        a("s_waitcnt vmcnt(0)")
        a(f"v_cmp_ne_u32 vcc, v220, v{vSNAP+bar}")
        a(f"s_and_b32 vcc_lo, vcc_lo, s{mask}")
        a(f"s_cbranch_scc1 {Lp}")
        a(f"s_cmp_lg_u32 s{sMODE}, 0")
        a(f"s_cbranch_scc0 {Le}")
        a("buffer_inv sc1")
        a("s_waitcnt vmcnt(0)")
        a.label(Le)
        a.label(Lw)
        a("s_barrier")

    def finish(self):
        a = self.a
        if self.stamps:
            self.stamp()
            a("s_waitcnt lgkmcnt(0)")
            a(f"s_lshl_b32 s{sT0}, s2, 2")
            a(f"s_add_u32 s{sT0}, s{sT0}, s{sW}")
            a(f"s_lshl_b32 s{sT1}, s{sT0}, 6")
            a(f"s_add_u32 s{sT1}, s{sT1}, {FLAG_OFF+0x10000}")
            for k in range(self.nst):
                a(f"v_mov_b32 v{220+k}, s{sTS+2*k}")
            a(f"v_mov_b32 v219, 0")
            a("s_mov_b64 exec, 1")
            for k in range(self.nst):
                a(f"buffer_store_dword v{220+k}, v219, {srd(sWS)}, s{sT1} offen offset:{4*k}")
            if 'dbgstamp' in EXP:
                Ln = a.newlabel()
                a(f"s_cmp_lg_u32 s{sT0}, {int(os.environ.get('DBGWG', '0'))*4}")
                a(f"s_cbranch_scc1 {Ln}")
                for k in range(1, self.nst):
                    a(f"v_subrev_u32 v{220+k}, s{sTS}, v{220+k}")
                for k in range(self.nst):
                    a(f"buffer_store_dword v{220+k}, v219, {srd(sDBG)}, 0 offen offset:{4*k} sc1")
                a.label(Ln)
            a("s_mov_b64 exec, -1")
        a("s_waitcnt vmcnt(0)")
        a.label("L_end")
        a("s_endpgm")

    def build(self):
        a = self.a
        self.setup()
        self.p1_main()
        self.stamp()
        self.p1_epilogue()
        self.stamp()
        if self.stop_after >= 2:
            self.barrier1()
            self.stamp()
            self.p2()
            self.stamp()
        if self.stop_after >= 3:
            self.cbarrier(0, sM2)
            self.stamp()
            self.p3()
            self.stamp()
        if self.stop_after >= 4:
            self.cbarrier(1, sM3)
            self.stamp()
            self.p4()
        self.finish()
        body = a.finalize(verbose=True)
        hdr = open('cdna_kernels/%s.s.ref' % NAME).read().split('\n')
        head = [l for l in hdr if l.startswith(';') and '@launch' not in l and 'Override' not in l and 'grid=ceil' not in l]
        txt = '\n'.join(head[:13]) + '\n'
        txt += f"; @launch grid=(256,1,1) block=(256,1,1) lds={LDS_TOTAL}\n"
        txt += '.amdgcn_target "amdgcn-amd-amdhsa--gfx950"\n.text\n'
        txt += f".globl {NAME}_kernel\n.p2align 8\n.type {NAME}_kernel,@function\n{NAME}_kernel:\n"
        txt += body
        txt += f'''.section .rodata,"a"
.p2align 6
.amdhsa_kernel {NAME}_kernel
  .amdhsa_next_free_vgpr 512
  .amdhsa_next_free_sgpr 102
  .amdhsa_accum_offset 256
  .amdhsa_group_segment_fixed_size 0
  .amdhsa_kernarg_size 80
  .amdhsa_user_sgpr_count 2
  .amdhsa_user_sgpr_kernarg_segment_ptr 1
  .amdhsa_system_sgpr_workgroup_id_x 1
.end_amdhsa_kernel
'''
        return txt

if __name__ == "__main__":
    import argparse
    ap = argparse.ArgumentParser()
    ap.add_argument('--stop', type=int, default=4)
    ap.add_argument('--stamps', action='store_true')
    ap.add_argument('--fine', type=int, default=0)
    ap.add_argument('-o', default='k.s')
    args = ap.parse_args()
    from gen2 import Gen2
    g = Gen2(args.stop, args.stamps, args.fine)
    open(args.o, 'w').write(g.build())
```
